```python
import torch

def _softmax(x, axis=-1):
    return torch.softmax(x, dim=axis)
def _gelu(x):
    return torch.nn.functional.gelu(x, approximate="tanh")
def _silu(x):
    return torch.nn.functional.silu(x)
def _sigmoid(x):
    return torch.sigmoid(x)
def _layernorm(x, axis=-1, eps=1e-5):
    m = x.mean(dim=axis, keepdim=True)
    v = x.var(dim=axis, keepdim=True, unbiased=False)
    return (x - m) / torch.sqrt(v + eps)
def _scatter_add(tgt, idx, src, axis=0):
    return tgt.clone().index_add_(axis, idx, src)
def _segment_sum(src, seg, n):
    out = torch.zeros((n,) + src.shape[1:], dtype=src.dtype)
    return out.index_add_(0, seg, src)
def _pad(x, pw):
    flat = tuple(v for pair in reversed(pw) for v in pair)
    return torch.nn.functional.pad(x, flat)

kernel_name = 'standalone__sliding_block_cached__decode'

def setup_inputs():

    _w = (lambda a: (lambda t: t.to(torch.bfloat16) if t.is_floating_point() else t)(torch.as_tensor(a)))
    B, Sq, D = 1, 1, 640
    Hq, Hkv, Sk, Dh = 32, 32, 4096, 192
    assert Hq % Hkv == 0, (Hq, Hkv)
    return {
        "x": _w((lambda *s: torch.randn(*s, dtype=torch.bfloat16) * 1.6)(B, Sq, D)),
        "k_cache": _w((lambda *s: torch.randn(*s, dtype=torch.bfloat16) * 1.6)(B, Hkv, Sk, Dh)),
        "v_cache": _w((lambda *s: torch.randn(*s, dtype=torch.bfloat16) * 0.05)(B, Hkv, Sk, Dh)),
        "wq": _w((lambda *s: torch.randn(*s, dtype=torch.bfloat16) * 1.6)(D, Hq * Dh) * (D ** -0.5)),
        "wo": _w((lambda *s: torch.randn(*s, dtype=torch.bfloat16) * 0.05)(Hq * Dh, D) * ((Hq * Dh) ** -0.5)),
    }

def reference(x, k_cache, v_cache, wq, wo):
    B, Sq, D = x.shape
    Hq, Dh = 32, 192
    Hkv, Sk = k_cache.shape[1], k_cache.shape[2]
    W = min(4096, max(256, Sk // 4))
    rep = Hq // Hkv
    q = (lambda x, *d: x.permute(*d))((x @ wq).reshape(B, Sq, Hq, Dh), 0, 2, 1, 3)
    k = (lambda x, n, axis: torch.repeat_interleave(x, n, dim=axis))(k_cache[:, :, Sk - W:, :], rep, axis=1)
    v = (lambda x, n, axis: torch.repeat_interleave(x, n, dim=axis))(v_cache[:, :, Sk - W:, :], rep, axis=1)
    scores = torch.einsum("bhqd,bhkd->bhqk", q, k) * (Dh ** -0.5)
    p = _softmax(scores, axis=-1)
    o = torch.einsum("bhqk,bhkd->bhqd", p, v)
    return (lambda x, *d: x.permute(*d))(o, 0, 2, 1, 3).reshape(B, Sq, Hq * Dh) @ wo
```

```python
import sys

NAME = "standalone__sliding_block_cached__decode"

HEADER = """; Kernarg layout for this problem (64 bytes, ptrs only, base s[0:1]):
;   offset  40: d_out     shape=(1, 1, 640) dtype=bfloat16 (2 bytes/elem)
"""

L_QP = 0x0000
L_QB = 0x1800
L_NONCE = 0x1A00
L_SC = 0x1B00
L_LS = 0x1D00
L_OF = 0x1E00
L_OP = 0x2200
L_P2 = 0x3A00
L_FR = 0x5800
LDS_BYTES = 0x6000

WS_Q = 0x0
WS_O = 0x80000
WS_F = 0x100000
WS_BYTES = 0x200000

TAGX = 0x9E3779B9
SCALE = 0x3D93CD3A
LOG2E = 0x3FB8AA3B
SPIN_MAX = 1 << 16


class E:
    def __init__(self):
        self.l = []

    def __call__(self, s):
        for line in s.strip("\n").split("\n"):
            self.l.append("    " + line.strip())

    def label(self, s):
        self.l.append(s + ":")

    def text(self):
        return "\n".join(self.l) + "\n"


def gen(opt):
    import struct
    assert struct.unpack("<I", struct.pack("<f", 192 ** -0.5))[0] == SCALE
    e = E()
    e(f"""
    s_cmp_ge_u32 s2, 256
    s_cbranch_scc1 L_end
    s_load_dwordx16 s[4:19], s[0:1], 0
    v_lshrrev_b32 v1, 6, v0
    v_and_b32 v0, 63, v0
    s_and_b32 s48, s2, 31
    s_lshr_b32 s49, s2, 5
    v_readfirstlane_b32 s50, v1
    s_waitcnt lgkmcnt(0)
    """)
    srds = [(20, 6, 50331648), (24, 8, 50331648), (28, 10, 7864320), (32, 12, 7864320),
            (36, 14, 1280), (40, 16, 256), (44, 18, WS_BYTES)]
    for d, p, n in srds:
        e(f"""
        s_mov_b32 s{d}, s{p}
        s_and_b32 s{d+1}, s{p+1}, 0xffff
        s_mov_b32 s{d+2}, {n}
        s_mov_b32 s{d+3}, 0x00020000
        """)
    e("""
    s_cmp_ge_u32 s50, 4
    s_cbranch_scc1 L_back
    """)

    WQ0 = 16
    K0 = 56
    QBV = 104
    e(f"""
    s_cmp_lg_u32 s50, 0
    s_cbranch_scc1 L_f_nononce
    s_memrealtime s[70:71]
    s_waitcnt lgkmcnt(0)
    s_or_b32 s70, s70, 1
    v_mov_b32 v12, s70
    v_mov_b32 v13, 0
    s_lshl_b32 s71, s48, 2
    v_mov_b32 v14, s71
    s_mov_b64 exec, 1
    buffer_atomic_cmpswap v[12:13], v14, s[40:43], 0 offen sc0 sc1
    s_mov_b64 exec, -1
    L_f_nononce:
    ; ---- x scalars ----
    s_mul_i32 s51, s49, 160
    s_mul_i32 s52, s50, 40
    s_add_u32 s51, s51, s52
    s_add_u32 s54, s4, s51
    s_addc_u32 s55, s5, 0
    s_load_dwordx8 s[56:63], s[54:55], 0
    s_load_dwordx2 s[64:65], s[54:55], 32
    v_and_b32 v1, 31, v0
    v_lshrrev_b32 v9, 5, v0
    v_mul_u32_u24 v1, 12, v1
    v_mul_u32_u24 v3, 0x3000, v9
    v_add_u32 v1, v1, v3
    s_mul_i32 s52, s49, 80
    s_mul_i32 s53, s50, 20
    s_add_u32 s52, s52, s53
    s_mul_i32 s52, s52, 12288
    s_mul_i32 s53, s48, 384
    s_add_u32 s52, s52, s53
    """)
    for i in range(10):
        e(f"buffer_load_dwordx3 v[{WQ0+4*i}:{WQ0+4*i+2}], v1, s[28:31], s52 offen")
        if i < 9:
            e("s_add_u32 s52, s52, 24576")
    e(f"""
    ; ---- K loads (MFMA A layout) ----
    v_and_b32 v2, 15, v0
    v_lshrrev_b32 v3, 4, v0
    v_mul_u32_u24 v2, 384, v2
    v_lshlrev_b32 v10, 4, v3
    v_add_u32 v2, v2, v10
    s_lshl_b32 s53, s49, 7
    s_lshl_b32 s52, s50, 5
    s_add_u32 s53, s53, s52
    s_add_u32 s53, s53, 3072
    s_mul_i32 s53, s53, 384
    s_mul_i32 s52, s48, 1572864
    s_add_u32 s53, s53, s52
    """)
    for t in range(2):
        for s in range(6):
            r = K0 + (t * 6 + s) * 4
            e(f"buffer_load_dwordx4 v[{r}:{r+3}], v2, s[20:23], s53 offen offset:{s*64}")
        if t == 0:
            e("s_add_u32 s53, s53, 6144")
    if opt.get("b0"):
        e("s_barrier")
    e(f"""
    ; ---- partial q ----
    v_cmp_gt_u32 vcc, 32, v0
    v_mov_b32 v11, 0
    v_mov_b32 v2, 0
    v_cndmask_b32 v9, v11, 16, vcc
    v_mov_b32 v3, 0
    v_mov_b32 v4, 0
    v_mov_b32 v5, 0
    v_mov_b32 v6, 0
    v_mov_b32 v7, 0
    s_waitcnt lgkmcnt(0)
    """)
    for i in range(10):
        e(f"s_waitcnt vmcnt({12 + 9 - i})")
        e(f"""
        v_lshlrev_b32_e64 v8, v9, s{56+i}
        v_and_b32 v8, 0xffff0000, v8
        """)
        for d in range(3):
            r = WQ0 + 4 * i + d
            e(f"""
            v_lshlrev_b32 v10, 16, v{r}
            v_and_b32 v11, 0xffff0000, v{r}
            v_fmac_f32 v{2+2*d}, v8, v10
            v_fmac_f32 v{3+2*d}, v8, v11
            """)
    e(f"""
    v_and_b32 v1, 31, v0
    v_lshrrev_b32 v9, 5, v0
    v_mul_u32_u24 v1, 24, v1
    v_mul_u32_u24 v9, 768, v9
    v_add_u32 v1, v1, v9
    s_mul_i32 s51, s50, 1536
    v_add_u32 v1, s51, v1
    ds_write_b64 v1, v[2:3] offset:{L_QP}
    ds_write_b64 v1, v[4:5] offset:{L_QP+8}
    ds_write_b64 v1, v[6:7] offset:{L_QP+16}
    s_cmp_lg_u32 s50, 0
    s_cbranch_scc1 L_f_nononce2
    v_cmp_eq_u32 vcc, 0, v12
    v_mov_b32 v13, s70
    v_mov_b32 v14, {L_NONCE}
    v_cndmask_b32 v12, v12, v13, vcc
    s_mov_b64 exec, 1
    ds_write_b32 v14, v12
    s_mov_b64 exec, -1
    L_f_nononce2:
    s_waitcnt lgkmcnt(0)
    s_barrier
    ; B1 done
    s_cmp_ge_u32 s50, 2
    s_cbranch_scc1 L_f_skipgather
    """)
    G0 = 16
    e(f"""
    s_cmp_eq_u32 s50, 1
    s_cselect_b32 s67, 0, -1
    s_mov_b32 s66, -1
    s_mov_b64 exec, s[66:67]
    s_lshl_b32 s51, s50, 6
    v_add_u32 v1, s51, v0
    v_lshlrev_b32 v8, 3, v1
    v_mov_b32 v14, {L_NONCE}
    ds_read_b32 v12, v14
    """)
    for p in range(8):
        e(f"ds_read_b64 v[{G0+2*p}:{G0+2*p+1}], v8 offset:{L_QP + p*768}")
    e("s_waitcnt lgkmcnt(0)")
    e(f"v_add_f32 v2, v{G0}, v{G0+2}")
    e(f"v_add_f32 v3, v{G0+1}, v{G0+3}")
    for p in range(2, 8):
        e(f"v_add_f32 v2, v2, v{G0+2*p}")
        e(f"v_add_f32 v3, v3, v{G0+2*p+1}")
    e(f"""
    v_mov_b32 v4, v12
    v_xor_b32 v5, {TAGX}, v12
    v_lshlrev_b32 v9, 4, v1
    s_mul_i32 s52, s48, 12288
    s_mul_i32 s53, s49, 1536
    s_add_u32 s53, s53, s52
    buffer_store_dwordx4 v[2:5], v9, s[44:47], s53 offen sc1
    s_mov_b32 s68, 0
    L_f_poll:
    s_mov_b32 s53, s52
    """)
    for jj in range(8):
        e(f"buffer_load_dwordx4 v[{G0+4*jj}:{G0+4*jj+3}], v9, s[44:47], s53 offen sc1")
        if jj < 7:
            e("s_add_u32 s53, s53, 1536")
    e("s_waitcnt vmcnt(0)")
    e("v_mov_b32 v10, 0")
    for jj in range(8):
        e(f"""
        v_xor_b32 v6, v{G0+4*jj+2}, v4
        v_xor_b32 v7, v{G0+4*jj+3}, v5
        v_or3_b32 v10, v10, v6, v7
        """)
    e(f"""
    v_cmp_ne_u32 vcc, 0, v10
    s_add_u32 s68, s68, 1
    s_cmp_ge_u32 s68, {SPIN_MAX}
    s_cbranch_scc1 L_f_polldone
    s_cbranch_vccnz L_f_poll
    L_f_polldone:
    """)
    e(f"v_add_f32 v2, v{G0}, v{G0+4}")
    e(f"v_add_f32 v3, v{G0+1}, v{G0+5}")
    for jj in range(2, 8):
        e(f"v_add_f32 v2, v2, v{G0+4*jj}")
        e(f"v_add_f32 v3, v3, v{G0+4*jj+1}")
    e(f"""
    v_cvt_pk_bf16_f32 v2, v2, v3
    v_lshlrev_b32 v8, 2, v1
    ds_write_b32 v8, v2 offset:{L_QB}
    s_mov_b64 exec, -1
    L_f_skipgather:
    s_waitcnt lgkmcnt(0)
    s_barrier
    v_lshrrev_b32 v3, 4, v0
    v_lshlrev_b32 v3, 4, v3
    """)
    for s in range(6):
        e(f"ds_read_b128 v[{QBV+4*s}:{QBV+4*s+3}], v3 offset:{L_QB + s*64}")
    e("s_waitcnt vmcnt(0) lgkmcnt(0)")
    for t in range(2):
        for s in range(6):
            r = K0 + (t * 6 + s) * 4
            c = "0" if s == 0 else f"v[{8+4*t}:{11+4*t}]"
            e(f"v_mfma_f32_16x16x32_bf16 v[{8+4*t}:{11+4*t}], v[{r}:{r+3}], v[{QBV+4*s}:{QBV+4*s+3}], {c}")
    e(f"""
    s_mov_b32 s56, {SCALE}
    s_nop 7
    s_nop 3
    """)
    for q in range(4):
        a = 8 + 2 * q
        e(f"""
        v_cvt_pk_bf16_f32 v2, v{a}, v{a+1}
        v_lshlrev_b32 v{a}, 16, v2
        v_and_b32 v{a+1}, 0xffff0000, v2
        v_mul_f32 v{a}, s56, v{a}
        v_mul_f32 v{a+1}, s56, v{a+1}
        v_cvt_pk_bf16_f32 v2, v{a}, v{a+1}
        v_lshlrev_b32 v{a}, 16, v2
        v_and_b32 v{a+1}, 0xffff0000, v2
        """)
    e(f"""
    v_lshrrev_b32 v3, 4, v0
    v_lshlrev_b32 v3, 4, v3
    s_lshl_b32 s51, s50, 7
    v_add_u32 v3, s51, v3
    s_mov_b32 s66, 0x00010001
    s_mov_b32 s67, 0x00010001
    s_mov_b64 exec, s[66:67]
    ds_write_b128 v3, v[8:11] offset:{L_SC}
    ds_write_b128 v3, v[12:15] offset:{L_SC+64}
    s_mov_b64 exec, -1
    s_waitcnt lgkmcnt(0)
    s_barrier
    s_endpgm
    """)

    V0 = 16
    WO0 = 80
    P0 = 112
    e.label("L_back")
    e("s_sub_u32 s50, s50, 4")

    def v_loads():
        e(f"""
        ; ---- V loads ----
        v_mul_u32_u24 v1, 12, v0
        s_lshl_b32 s53, s49, 7
        s_lshl_b32 s52, s50, 5
        s_add_u32 s53, s53, s52
        s_add_u32 s53, s53, 3072
        s_mul_i32 s53, s53, 384
        s_mul_i32 s52, s48, 1572864
        s_add_u32 s53, s53, s52
        """)
        for i in range(16):
            r = V0 + 4 * i
            e(f"buffer_load_dwordx3 v[{r}:{r+2}], v1, s[24:27], s53 offen offset:{(i % 4) * 768}")
            if i % 4 == 3 and i < 15:
                e("s_add_u32 s53, s53, 3072")

    def wo_loads():
        e(f"""
        v_mul_u32_u24 v2, 205, v0
        v_lshrrev_b32 v2, 11, v2
        v_mul_u32_u24 v3, 10, v2
        v_sub_u32 v3, v0, v3
        v_mul_u32_u24 v4, 1280, v2
        v_lshlrev_b32 v5, 4, v3
        v_add_u32 v4, v4, v5
        v_cmp_gt_u32 vcc, 60, v0
        v_mov_b32 v5, 0x7ffffff0
        s_nop 1
        v_cndmask_b32 v4, v5, v4, vcc
        s_mul_i32 s52, s48, 192
        s_mul_i32 s51, s50, 48
        s_add_u32 s52, s52, s51
        s_mul_i32 s52, s52, 1280
        s_mul_i32 s51, s49, 160
        s_add_u32 s52, s52, s51
        """)
        for i in range(8):
            r = WO0 + 4 * i
            e(f"buffer_load_dwordx4 v[{r}:{r+3}], v4, s[32:35], s52 offen")
            if i < 7:
                e("s_add_u32 s52, s52, 7680")

    vwhen = opt.get("vwhen", 0)
    wwhen = opt.get("wwhen", 0)
    if opt.get("b0"):
        e("s_barrier")
    if vwhen == 0:
        v_loads()
    if wwhen == 0:
        wo_loads()
    e("s_barrier")
    if vwhen == 1:
        v_loads()
    if wwhen == 1:
        wo_loads()
    e("s_barrier")
    if vwhen == 2:
        v_loads()
    if wwhen == 2:
        wo_loads()
    e("s_barrier")
    if wwhen == 3:
        wo_loads()
    n_wo_after_v = 8 if wwhen >= vwhen else 0
    assert wwhen >= vwhen
    e(f"""
    v_lshlrev_b32 v8, 3, v0
    ds_read_b64 v[8:9], v8 offset:{L_SC}
    v_mov_b32 v14, {L_NONCE}
    ds_read_b32 v12, v14
    v_lshrrev_b32 v10, 5, v0
    v_lshlrev_b32 v10, 2, v10
    s_lshl_b32 s51, s50, 7
    v_add_u32 v10, s51, v10
    """)
    for i in range(16):
        e(f"ds_read_b32 v{P0+i}, v10 offset:{L_SC + i*8}")
    e(f"""
    s_waitcnt lgkmcnt(0)
    v_max_f32 v8, v8, v9
    s_nop 1
    v_max_f32_dpp v8, v8, v8 row_shr:1 row_mask:0xf bank_mask:0xf
    s_nop 1
    v_max_f32_dpp v8, v8, v8 row_shr:2 row_mask:0xf bank_mask:0xf
    s_nop 1
    v_max_f32_dpp v8, v8, v8 row_shr:4 row_mask:0xf bank_mask:0xf
    s_nop 1
    v_max_f32_dpp v8, v8, v8 row_shr:8 row_mask:0xf bank_mask:0xf
    s_nop 1
    v_max_f32_dpp v8, v8, v8 row_bcast:15 row_mask:0xa bank_mask:0xf
    s_nop 1
    v_max_f32_dpp v8, v8, v8 row_bcast:31 row_mask:0xc bank_mask:0xf
    s_nop 1
    v_readlane_b32 s57, v8, 63
    s_mov_b32 s58, {LOG2E}
    s_nop 1
    v_mov_b32 v9, 0
    """)
    for i in range(16):
        e(f"""
        v_subrev_f32 v{P0+i}, s57, v{P0+i}
        v_mul_f32 v{P0+i}, s58, v{P0+i}
        v_exp_f32 v{P0+i}, v{P0+i}
        """)
    e("s_nop 0")
    for i in range(16):
        e(f"v_add_f32 v9, v9, v{P0+i}")
    e("""
    v_mov_b32 v2, 0
    v_mov_b32 v3, 0
    v_mov_b32 v4, 0
    v_mov_b32 v5, 0
    v_mov_b32 v6, 0
    v_mov_b32 v7, 0
    """)
    for i in range(16):
        e(f"s_waitcnt vmcnt({n_wo_after_v + 15 - i})")
        for d in range(3):
            r = V0 + 4 * i + d
            e(f"""
            v_lshlrev_b32 v10, 16, v{r}
            v_and_b32 v11, 0xffff0000, v{r}
            v_fmac_f32 v{2+2*d}, v{P0+i}, v10
            v_fmac_f32 v{3+2*d}, v{P0+i}, v11
            """)
    e(f"""
    v_and_b32 v1, 31, v0
    v_lshrrev_b32 v10, 5, v0
    v_mul_u32_u24 v1, 24, v1
    v_mul_u32_u24 v11, 768, v10
    v_add_u32 v1, v1, v11
    s_mul_i32 s51, s50, 1536
    v_add_u32 v1, s51, v1
    ds_write_b64 v1, v[2:3] offset:{L_OP}
    ds_write_b64 v1, v[4:5] offset:{L_OP+8}
    ds_write_b64 v1, v[6:7] offset:{L_OP+16}
    v_lshlrev_b32 v10, 2, v10
    s_lshl_b32 s51, s50, 3
    v_add_u32 v10, s51, v10
    s_mov_b32 s66, 1
    s_mov_b32 s67, 1
    s_mov_b64 exec, s[66:67]
    ds_write_b32 v10, v9 offset:{L_LS}
    s_mov_b64 exec, -1
    s_waitcnt lgkmcnt(0)
    s_barrier
    ; B4 done
    s_cmp_ge_u32 s50, 2
    s_cbranch_scc1 L_b_skipgather
    """)
    GO = 16
    GM = 48
    e(f"""
    s_cmp_eq_u32 s50, 1
    s_cselect_b32 s67, 0, -1
    s_mov_b32 s66, -1
    s_mov_b64 exec, s[66:67]
    s_lshl_b32 s51, s50, 6
    v_add_u32 v1, s51, v0
    v_lshlrev_b32 v8, 3, v1
    v_mov_b32 v14, {L_LS}
    ds_read_b128 v[{GM}:{GM+3}], v14
    ds_read_b128 v[{GM+4}:{GM+7}], v14 offset:16
    """)
    for p in range(8):
        e(f"ds_read_b64 v[{GO+2*p}:{GO+2*p+1}], v8 offset:{L_OP + p*768}")
    e("s_waitcnt lgkmcnt(0)")
    e(f"v_add_f32 v2, v{GO}, v{GO+2}")
    e(f"v_add_f32 v3, v{GO+1}, v{GO+3}")
    for p in range(2, 8):
        e(f"v_add_f32 v2, v2, v{GO+2*p}")
        e(f"v_add_f32 v3, v3, v{GO+2*p+1}")
    e(f"v_add_f32 v7, v{GM}, v{GM+1}")
    for p in range(2, 8):
        e(f"v_add_f32 v7, v7, v{GM+p}")
    e(f"""
    v_mov_b32 v4, v12
    v_xor_b32 v5, {TAGX}, v12
    v_lshlrev_b32 v9, 4, v1
    s_lshl_b32 s52, s48, 14
    s_add_u32 s52, s52, {WS_O}
    s_lshl_b32 s53, s49, 11
    s_add_u32 s53, s53, s52
    buffer_store_dwordx4 v[2:5], v9, s[44:47], s53 offen sc1
    v_mov_b32 v13, 1536
    s_cmp_lg_u32 s50, 0
    s_cbranch_scc1 L_b_noml
    """)
    e(f"""
    v_mov_b32 v{GM}, s57
    v_mov_b32 v{GM+1}, v7
    v_mov_b32 v{GM+2}, v4
    v_mov_b32 v{GM+3}, v5
    s_mov_b64 exec, 1
    buffer_store_dwordx4 v[{GM}:{GM+3}], v13, s[44:47], s53 offen sc1
    s_mov_b64 exec, -1
    L_b_noml:
    s_mov_b32 s68, 0
    L_b_poll:
    s_mov_b32 s53, s52
    """)
    for jj in range(8):
        e(f"buffer_load_dwordx4 v[{GO+4*jj}:{GO+4*jj+3}], v9, s[44:47], s53 offen sc1")
        e(f"buffer_load_dwordx4 v[{GM+4*jj}:{GM+4*jj+3}], v13, s[44:47], s53 offen sc1")
        if jj < 7:
            e("s_add_u32 s53, s53, 2048")
    e("s_waitcnt vmcnt(0)")
    e("v_mov_b32 v10, 0")
    for jj in range(8):
        e(f"""
        v_xor_b32 v6, v{GO+4*jj+2}, v4
        v_xor_b32 v7, v{GO+4*jj+3}, v5
        v_or3_b32 v10, v10, v6, v7
        v_xor_b32 v6, v{GM+4*jj+2}, v4
        v_xor_b32 v7, v{GM+4*jj+3}, v5
        v_or3_b32 v10, v10, v6, v7
        """)
    e(f"""
    v_cmp_ne_u32 vcc, 0, v10
    s_add_u32 s68, s68, 1
    s_cmp_ge_u32 s68, {SPIN_MAX}
    s_cbranch_scc1 L_b_polldone
    s_cbranch_vccnz L_b_poll
    L_b_polldone:
    """)
    e(f"v_max_f32 v6, v{GM}, v{GM+4}")
    for jj in range(2, 8):
        e(f"v_max_f32 v6, v6, v{GM+4*jj}")
    for jj in range(8):
        e(f"""
        v_sub_f32 v{GM+4*jj}, v{GM+4*jj}, v6
        v_mul_f32 v{GM+4*jj}, s58, v{GM+4*jj}
        v_exp_f32 v{GM+4*jj}, v{GM+4*jj}
        """)
    e("""
    s_nop 0
    v_mov_b32 v2, 0
    v_mov_b32 v3, 0
    v_mov_b32 v7, 0
    """)
    for jj in range(8):
        e(f"""
        v_fmac_f32 v2, v{GM+4*jj}, v{GO+4*jj}
        v_fmac_f32 v3, v{GM+4*jj}, v{GO+4*jj+1}
        v_fmac_f32 v7, v{GM+4*jj}, v{GM+4*jj+1}
        """)
    e(f"""
    v_rcp_f32 v7, v7
    s_nop 0
    v_mul_f32 v2, v2, v7
    v_mul_f32 v3, v3, v7
    v_cvt_pk_bf16_f32 v6, v2, v3
    v_lshlrev_b32 v2, 16, v6
    v_and_b32 v3, 0xffff0000, v6
    v_lshlrev_b32 v8, 3, v1
    ds_write_b64 v8, v[2:3] offset:{L_OF}
    s_mov_b64 exec, -1
    L_b_skipgather:
    s_waitcnt lgkmcnt(0)
    s_barrier
    v_mul_u32_u24 v2, 205, v0
    v_lshrrev_b32 v2, 11, v2
    v_mul_u32_u24 v3, 10, v2
    v_sub_u32 v3, v0, v3
    v_lshlrev_b32 v4, 2, v2
    s_mul_i32 s51, s50, 192
    v_add_u32 v4, s51, v4
    """)
    OV = 16
    AC = 24
    for i in range(8):
        e(f"ds_read_b32 v{OV+i}, v4 offset:{L_OF + i*24}")
    for c in range(8):
        e(f"v_mov_b32 v{AC+c}, 0")
    e("s_waitcnt vmcnt(0) lgkmcnt(0)")
    for i in range(8):
        for d in range(4):
            r = WO0 + 4 * i + d
            e(f"""
            v_lshlrev_b32 v10, 16, v{r}
            v_and_b32 v11, 0xffff0000, v{r}
            v_fmac_f32 v{AC+2*d}, v{OV+i}, v10
            v_fmac_f32 v{AC+2*d+1}, v{OV+i}, v11
            """)
    e(f"""
    v_mul_u32_u24 v4, 320, v2
    v_lshlrev_b32 v5, 5, v3
    v_add_u32 v4, v4, v5
    s_mul_i32 s51, s50, 1920
    v_add_u32 v4, s51, v4
    s_mov_b32 s66, -1
    s_mov_b32 s67, 0x0fffffff
    s_mov_b64 exec, s[66:67]
    ds_write_b128 v4, v[{AC}:{AC+3}] offset:{L_P2}
    ds_write_b128 v4, v[{AC+4}:{AC+7}] offset:{L_P2+16}
    s_mov_b64 exec, -1
    s_waitcnt lgkmcnt(0)
    s_barrier
    ; B6 done
    s_cmp_lg_u32 s50, 0
    s_cbranch_scc1 L_b_nopub
    s_mov_b32 s66, -1
    s_mov_b32 s67, 0xff
    s_mov_b64 exec, s[66:67]
    v_lshlrev_b32 v8, 3, v0
    """)
    for p in range(24):
        e(f"ds_read_b64 v[{16+2*p}:{17+2*p}], v8 offset:{L_P2 + p*320}")
    e("s_waitcnt lgkmcnt(0)")
    e("v_add_f32 v2, v16, v18")
    e("v_add_f32 v3, v17, v19")
    for p in range(2, 24):
        e(f"v_add_f32 v2, v2, v{16+2*p}")
        e(f"v_add_f32 v3, v3, v{17+2*p}")
    e(f"""
    v_mov_b32 v4, v12
    v_xor_b32 v5, {TAGX}, v12
    v_lshlrev_b32 v9, 4, v0
    s_lshl_b32 s52, s49, 5
    s_add_u32 s52, s52, s48
    s_lshl_b32 s52, s52, 10
    s_add_u32 s52, s52, {WS_F}
    buffer_store_dwordx4 v[2:5], v9, s[44:47], s52 offen sc1
    s_mov_b64 exec, -1
    L_b_nopub:
    s_cmp_lg_u32 s48, s49
    s_cbranch_scc1 L_end
    s_mov_b32 s66, -1
    s_mov_b32 s67, 0xff
    s_mov_b64 exec, s[66:67]
    v_lshlrev_b32 v9, 4, v0
    s_lshl_b32 s52, s49, 5
    s_lshl_b32 s51, s50, 3
    s_add_u32 s52, s52, s51
    s_lshl_b32 s52, s52, 10
    s_add_u32 s52, s52, {WS_F}
    s_lshl_b32 s51, s50, 5
    v_mov_b32 v14, s51
    s_mov_b32 s68, 0
    L_r_poll:
    s_mov_b32 s53, s52
    buffer_load_dwordx4 v[48:51], v14, s[40:43], 0 offen sc1
    buffer_load_dwordx4 v[52:55], v14, s[40:43], 0 offen offset:16 sc1
    """)
    for hh in range(8):
        e(f"buffer_load_dwordx4 v[{16+4*hh}:{19+4*hh}], v9, s[44:47], s53 offen sc1")
        if hh < 7:
            e("s_add_u32 s53, s53, 1024")
    e("s_waitcnt vmcnt(0)")
    e("v_mov_b32 v10, 0")
    for hh in range(8):
        e(f"""
        v_xor_b32 v6, v{16+4*hh+2}, v{48+hh}
        v_xor_b32 v7, {TAGX}, v{48+hh}
        v_xor_b32 v7, v{16+4*hh+3}, v7
        v_or3_b32 v10, v10, v6, v7
        """)
    e(f"""
    v_cmp_ne_u32 vcc, 0, v10
    s_add_u32 s68, s68, 1
    s_cmp_ge_u32 s68, {SPIN_MAX}
    s_cbranch_scc1 L_r_polldone
    s_cbranch_vccnz L_r_poll
    L_r_polldone:
    v_add_f32 v2, v16, v20
    v_add_f32 v3, v17, v21
    """)
    for hh in range(2, 8):
        e(f"v_add_f32 v2, v2, v{16+4*hh}")
        e(f"v_add_f32 v3, v3, v{17+4*hh}")
    e(f"""
    v_lshlrev_b32 v8, 3, v0
    s_mul_i32 s51, s50, 320
    v_add_u32 v4, s51, v8
    ds_write_b64 v4, v[2:3] offset:{L_FR}
    s_mov_b64 exec, -1
    s_waitcnt lgkmcnt(0)
    s_barrier
    s_cmp_lg_u32 s50, 0
    s_cbranch_scc1 L_end
    s_mov_b64 exec, s[66:67]
    ds_read_b64 v[16:17], v8 offset:{L_FR}
    ds_read_b64 v[18:19], v8 offset:{L_FR+320}
    ds_read_b64 v[20:21], v8 offset:{L_FR+640}
    ds_read_b64 v[22:23], v8 offset:{L_FR+960}
    s_waitcnt lgkmcnt(0)
    v_add_f32 v2, v16, v18
    v_add_f32 v3, v17, v19
    v_add_f32 v2, v2, v20
    v_add_f32 v3, v3, v21
    v_add_f32 v2, v2, v22
    v_add_f32 v3, v3, v23
    v_cvt_pk_bf16_f32 v2, v2, v3
    v_lshlrev_b32 v8, 2, v0
    s_mul_i32 s51, s49, 160
    buffer_store_dword v2, v8, s[36:39], s51 offen
    s_waitcnt vmcnt(0)
    """)
    e.label("L_end")
    e("s_endpgm")

    body = e.text().replace("    L_", "L_")
    out = HEADER
    out += f"; @launch grid=(256,1,1) block=(512,1,1) lds={LDS_BYTES}\n"
    out += f""".amdgcn_target "amdgcn-amd-amdhsa--gfx950"
.text
.globl {NAME}_kernel
.p2align 8
.type {NAME}_kernel,@function
{NAME}_kernel:
{body}.section .rodata,"a"
.p2align 6
.amdhsa_kernel {NAME}_kernel
  .amdhsa_next_free_vgpr 128
  .amdhsa_next_free_sgpr 96
  .amdhsa_accum_offset 128
  .amdhsa_group_segment_fixed_size 0
  .amdhsa_kernarg_size 64
  .amdhsa_user_sgpr_count 2
  .amdhsa_user_sgpr_kernarg_segment_ptr 1
  .amdhsa_system_sgpr_workgroup_id_x 1
  .amdhsa_float_denorm_mode_32 3
.end_amdhsa_kernel
"""
    return out


if __name__ == "__main__":
    opt = {}
    outp = f"cdna_kernels/{NAME}.s"
    for a in sys.argv[1:]:
        k, v = a.split("=")
        if k == "out":
            outp = v
        else:
            opt[k] = int(v)
    open(outp, "w").write(gen(opt))
    print("wrote", outp)
```

```python
import sys
import struct

NAME = "standalone__sliding_block_cached__decode"

HEADER = """; Kernarg layout for this problem (64 bytes, ptrs only, base s[0:1]):
;   offset  40: d_out     shape=(1, 1, 640) dtype=bfloat16 (2 bytes/elem)
"""

L_QP = 0x0000
L_QB = 0x1800
L_NONCE = 0x1A00
L_CNT = 0x1A20
L_SC = 0x1B00
L_LS = 0x1D00
L_OF = 0x1E00
L_OP = 0x2200
L_P2 = 0x3A00
L_FR = 0x5800
LDS_BYTES = 0x6000

WS_Q = 0x0
WS_O = 0x80000
WS_F = 0x100000
WS_BYTES = 0x400000
DELTA = 0x200000

TAGX = 0x9E3779B9
SCALE = 0x3D93CD3A
LOG2E = 0x3FB8AA3B
SPIN_MAX = 1 << 16


class E:
    def __init__(self):
        self.l = []

    def __call__(self, s):
        for line in s.strip("\n").split("\n"):
            t = line.strip()
            if not t:
                continue
            if t.endswith(":") and " " not in t:
                self.l.append(t)
            else:
                self.l.append("    " + t)

    def text(self):
        return "\n".join(self.l) + "\n"


def gen(opt):
    assert struct.unpack("<I", struct.pack("<f", 192 ** -0.5))[0] == SCALE
    e = E()
    ST = opt.get("stamps", 0)
    wwhen = opt.get("wwhen", 2)
    KD = opt.get("kd", 0)
    PF = "" if opt.get("plainpub", 0) else "sc1"
    VD = opt.get("vd", 0)

    def stamp(idx):
        if ST:
            e(f"""
            s_memrealtime s[72:73]
            s_waitcnt lgkmcnt(0)
            s_mov_b32 s{74+idx}, s72
            """)

    def stamp_out(part, lab):
        if ST:
            e(f"""
            s_mov_b64 exec, -1
            s_cmp_lg_u32 s51, 0
            s_cbranch_scc1 {lab}
            s_lshl_b32 s72, s2, 8
            s_add_u32 s72, s72, {0x180000 + part*80}
            v_mov_b32 v3, 0
            s_mov_b64 exec, 1
            """)
            for i in range(20):
                e(f"v_mov_b32 v2, s{74+i}")
                e(f"buffer_store_dword v2, v3, s[44:47], s72 offen offset:{i*4}")
                e("s_nop 1")
            e("s_waitcnt vmcnt(0)")
            e(f"{lab}:")

    lab_n = [0]

    def signal(k):
        e(f"""
        v_mov_b32 v126, {L_CNT + 4*k}
        v_mov_b32 v127, 1
        s_mov_b64 s[68:69], exec
        s_mov_b64 exec, 1
        ds_add_u32 v126, v127
        s_mov_b64 exec, s[68:69]
        """)

    def wait_cnt(k, n):
        lab_n[0] += 1
        a = f"L_w{lab_n[0]}"
        e(f"""
        v_mov_b32 v126, {L_CNT + 4*k}
        s_mov_b32 s69, 0
        {a}:
        ds_read_b32 v127, v126
        s_waitcnt lgkmcnt(0)
        v_readfirstlane_b32 s68, v127
        s_add_u32 s69, s69, 1
        s_cmp_ge_u32 s69, {SPIN_MAX * 16}
        s_cbranch_scc1 {a}d
        s_cmp_lt_u32 s68, {n}
        s_cbranch_scc1 {a}
        {a}d:
        """)

    e(f"""
    s_cmp_ge_u32 s2, 256
    s_cbranch_scc1 L_end
    s_load_dwordx16 s[4:19], s[0:1], 0
    s_memrealtime s[70:71]
    v_lshrrev_b32 v1, 6, v0
    v_and_b32 v0, 63, v0
    s_and_b32 s48, s2, 31
    s_lshr_b32 s49, s2, 5
    v_readfirstlane_b32 s50, v1
    s_waitcnt lgkmcnt(0)
    """)
    srds = [(20, 6, 50331648), (24, 8, 50331648), (28, 10, 7864320), (32, 12, 7864320),
            (36, 14, 1280), (40, 16, 256), (44, 18, WS_BYTES)]
    for d, p, n in srds:
        e(f"""
        s_mov_b32 s{d}, s{p}
        s_and_b32 s{d+1}, s{p+1}, 0xffff
        s_mov_b32 s{d+2}, {n}
        s_mov_b32 s{d+3}, 0x00020000
        """)
    if ST:
        for i in range(20):
            e(f"s_mov_b32 s{74+i}, 0")
    stamp(0)
    e("""
    s_and_b32 s51, s50, 3
    s_cmp_ge_u32 s50, 8
    s_cbranch_scc1 L_vrole
    s_cmp_ge_u32 s50, 4
    s_cbranch_scc1 L_krole
    """)

    WQ0 = 16
    e(f"""
    s_cmp_lg_u32 s51, 0
    s_cbranch_scc1 L_q_nononce
    s_or_b32 s70, s70, 1
    v_mov_b32 v12, s70
    v_mov_b32 v13, 0
    s_lshl_b32 s71, s48, 2
    v_mov_b32 v14, s71
    v_mov_b32 v2, 0
    v_lshlrev_b32 v3, 2, v0
    s_mov_b64 exec, 1
    buffer_atomic_cmpswap v[12:13], v14, s[40:43], 0 offen sc0 sc1
    s_mov_b64 exec, 0xff
    ds_write_b32 v3, v2 offset:{L_CNT}
    s_mov_b64 exec, -1
    L_q_nononce:
    s_mul_i32 s52, s49, 160
    s_mul_i32 s53, s51, 40
    s_add_u32 s52, s52, s53
    s_add_u32 s54, s4, s52
    s_addc_u32 s55, s5, 0
    s_load_dwordx8 s[56:63], s[54:55], 0
    s_load_dwordx2 s[64:65], s[54:55], 32
    v_and_b32 v1, 31, v0
    v_lshrrev_b32 v9, 5, v0
    v_mul_u32_u24 v1, 12, v1
    v_mul_u32_u24 v3, 0x3000, v9
    v_add_u32 v1, v1, v3
    s_mul_i32 s52, s49, 80
    s_mul_i32 s53, s51, 20
    s_add_u32 s52, s52, s53
    s_mul_i32 s52, s52, 12288
    s_mul_i32 s53, s48, 384
    s_add_u32 s52, s52, s53
    """)
    for i in range(10):
        e(f"buffer_load_dwordx3 v[{WQ0+4*i}:{WQ0+4*i+2}], v1, s[28:31], s52 offen nt")
        if i < 9:
            e("s_add_u32 s52, s52, 24576")
    stamp(1)
    e(f"""
    s_waitcnt lgkmcnt(0)
    s_barrier
    ; B0a
    v_cmp_gt_u32 vcc, 32, v0
    v_mov_b32 v11, 0
    v_mov_b32 v2, 0
    v_cndmask_b32 v9, v11, 16, vcc
    v_mov_b32 v3, 0
    v_mov_b32 v4, 0
    v_mov_b32 v5, 0
    v_mov_b32 v6, 0
    v_mov_b32 v7, 0
    s_waitcnt lgkmcnt(0)
    """)
    for i in range(10):
        e(f"s_waitcnt vmcnt({9 - i})")
        e(f"""
        v_lshlrev_b32_e64 v8, v9, s{56+i}
        v_and_b32 v8, 0xffff0000, v8
        """)
        for d in range(3):
            r = WQ0 + 4 * i + d
            e(f"""
            v_lshlrev_b32 v10, 16, v{r}
            v_and_b32 v11, 0xffff0000, v{r}
            v_fmac_f32 v{2+2*d}, v8, v10
            v_fmac_f32 v{3+2*d}, v8, v11
            """)
    stamp(2)
    e(f"""
    v_and_b32 v1, 31, v0
    v_lshrrev_b32 v9, 5, v0
    v_mul_u32_u24 v1, 24, v1
    v_mul_u32_u24 v9, 768, v9
    v_add_u32 v1, v1, v9
    s_mul_i32 s52, s51, 1536
    v_add_u32 v1, s52, v1
    ds_write_b64 v1, v[2:3] offset:{L_QP}
    ds_write_b64 v1, v[4:5] offset:{L_QP+8}
    ds_write_b64 v1, v[6:7] offset:{L_QP+16}
    s_cmp_lg_u32 s51, 0
    s_cbranch_scc1 L_q_nononce2
    v_cmp_eq_u32 vcc, 0, v12
    v_mov_b32 v13, s70
    v_mov_b32 v14, {L_NONCE}
    v_cndmask_b32 v12, v12, v13, vcc
    s_mov_b64 exec, 1
    ds_write_b32 v14, v12
    s_mov_b64 exec, -1
    L_q_nononce2:
    """)
    signal(1)
    wait_cnt(1, 4)
    stamp(3)
    G0 = 16
    e(f"""
    v_mov_b32 v14, {L_NONCE}
    ds_read_b32 v12, v14
    s_lshr_b32 s60, s51, 1
    s_and_b32 s61, s51, 1
    s_cmp_eq_u32 s61, 1
    s_cselect_b32 s67, 0, -1
    s_mov_b32 s66, -1
    s_mov_b64 exec, s[66:67]
    s_lshl_b32 s52, s61, 6
    v_add_u32 v1, s52, v0
    v_lshlrev_b32 v8, 3, v1
    """)
    for p in range(8):
        e(f"ds_read_b64 v[{G0+2*p}:{G0+2*p+1}], v8 offset:{L_QP + p*768}")
    e("s_waitcnt lgkmcnt(0)")
    e(f"v_add_f32 v2, v{G0}, v{G0+2}")
    e(f"v_add_f32 v3, v{G0+1}, v{G0+3}")
    for p in range(2, 8):
        e(f"v_add_f32 v2, v2, v{G0+2*p}")
        e(f"v_add_f32 v3, v3, v{G0+2*p+1}")
    e(f"""
    v_mov_b32 v4, v12
    v_xor_b32 v5, {TAGX}, v12
    v_lshlrev_b32 v9, 4, v1
    s_mul_i32 s52, s48, 12288
    s_mul_i32 s53, s49, 1536
    s_add_u32 s53, s53, s52
    s_cmp_eq_u32 s60, 0
    s_cbranch_scc1 L_q_pubA1
    s_add_u32 s53, s53, {DELTA}
    buffer_store_dwordx4 v[2:5], v9, s[44:47], s53 offen sc1
    s_mov_b64 exec, -1
    s_branch L_q_afterq
    L_q_pubA1:
    buffer_store_dwordx4 v[2:5], v9, s[44:47], s53 offen
    """)
    stamp(4)
    e(f"""
    s_mov_b32 s68, 0
    L_q_poll1:
    s_and_b32 s53, s68, 3
    s_cmp_eq_u32 s53, 3
    s_cselect_b32 s53, {DELTA}, 0
    s_add_u32 s53, s53, s52
    """)
    for jj in range(8):
        e(f"buffer_load_dwordx4 v[{G0+4*jj}:{G0+4*jj+3}], v9, s[44:47], s53 offen sc1")
        if jj < 7:
            e("s_add_u32 s53, s53, 1536")
    e("s_waitcnt vmcnt(0)")
    e("v_mov_b32 v10, 0")
    for jj in range(8):
        e(f"""
        v_xor_b32 v6, v{G0+4*jj+2}, v4
        v_xor_b32 v7, v{G0+4*jj+3}, v5
        v_or3_b32 v10, v10, v6, v7
        """)
    e(f"""
    v_cmp_ne_u32 vcc, 0, v10
    s_add_u32 s68, s68, 1
    s_cmp_ge_u32 s68, {SPIN_MAX}
    s_cbranch_scc1 L_q_poll1done
    s_cbranch_vccnz L_q_poll1
    L_q_poll1done:
    """)
    stamp(5)
    e(f"v_add_f32 v2, v{G0}, v{G0+4}")
    e(f"v_add_f32 v3, v{G0+1}, v{G0+5}")
    for jj in range(2, 8):
        e(f"v_add_f32 v2, v2, v{G0+4*jj}")
        e(f"v_add_f32 v3, v3, v{G0+4*jj+1}")
    e(f"""
    v_cvt_pk_bf16_f32 v2, v2, v3
    v_lshlrev_b32 v8, 2, v1
    ds_write_b32 v8, v2 offset:{L_QB}
    s_mov_b64 exec, -1
    """)
    signal(2)
    e("L_q_afterq:")
    wait_cnt(4, 4)
    stamp(6)
    GO = 16
    GM = 48
    e(f"""
    s_mov_b64 exec, s[66:67]
    v_lshlrev_b32 v8, 3, v1
    v_mov_b32 v14, {L_LS}
    ds_read_b128 v[{GM}:{GM+3}], v14
    ds_read_b128 v[{GM+4}:{GM+7}], v14 offset:16
    ds_read_b32 v15, v14 offset:32
    """)
    for p in range(8):
        e(f"ds_read_b64 v[{GO+2*p}:{GO+2*p+1}], v8 offset:{L_OP + p*768}")
    e("s_waitcnt lgkmcnt(0)")
    e(f"v_add_f32 v2, v{GO}, v{GO+2}")
    e(f"v_add_f32 v3, v{GO+1}, v{GO+3}")
    for p in range(2, 8):
        e(f"v_add_f32 v2, v2, v{GO+2*p}")
        e(f"v_add_f32 v3, v3, v{GO+2*p+1}")
    e(f"v_add_f32 v7, v{GM}, v{GM+1}")
    for p in range(2, 8):
        e(f"v_add_f32 v7, v7, v{GM+p}")
    e(f"""
    s_lshl_b32 s52, s48, 14
    s_add_u32 s52, s52, {WS_O}
    s_lshl_b32 s53, s49, 11
    s_add_u32 s53, s53, s52
    v_mov_b32 v13, 1536
    v_mov_b32 v{GM}, v15
    v_mov_b32 v{GM+1}, v7
    v_mov_b32 v{GM+2}, v4
    v_mov_b32 v{GM+3}, v5
    s_cmp_eq_u32 s60, 0
    s_cbranch_scc1 L_q_pubA2
    s_add_u32 s53, s53, {DELTA}
    buffer_store_dwordx4 v[2:5], v9, s[44:47], s53 offen sc1
    s_mov_b64 exec, -1
    s_cmp_lg_u32 s61, 0
    s_cbranch_scc1 L_q_skip1
    s_mov_b64 exec, 1
    buffer_store_dwordx4 v[{GM}:{GM+3}], v13, s[44:47], s53 offen sc1
    s_mov_b64 exec, -1
    s_branch L_q_skip1
    L_q_pubA2:
    buffer_store_dwordx4 v[2:5], v9, s[44:47], s53 offen
    s_cmp_lg_u32 s61, 0
    s_cbranch_scc1 L_q_noml
    s_mov_b64 exec, 1
    buffer_store_dwordx4 v[{GM}:{GM+3}], v13, s[44:47], s53 offen
    s_mov_b64 exec, s[66:67]
    L_q_noml:
    """)
    stamp(7)
    e(f"""
    s_mov_b32 s68, 0
    L_q_poll2:
    s_and_b32 s53, s68, 3
    s_cmp_eq_u32 s53, 3
    s_cselect_b32 s53, {DELTA}, 0
    s_add_u32 s53, s53, s52
    """)
    for jj in range(8):
        e(f"buffer_load_dwordx4 v[{GO+4*jj}:{GO+4*jj+3}], v9, s[44:47], s53 offen sc1")
        e(f"buffer_load_dwordx4 v[{GM+4*jj}:{GM+4*jj+3}], v13, s[44:47], s53 offen sc1")
        if jj < 7:
            e("s_add_u32 s53, s53, 2048")
    e("s_waitcnt vmcnt(0)")
    e("v_mov_b32 v10, 0")
    for jj in range(8):
        e(f"""
        v_xor_b32 v6, v{GO+4*jj+2}, v4
        v_xor_b32 v7, v{GO+4*jj+3}, v5
        v_or3_b32 v10, v10, v6, v7
        v_xor_b32 v6, v{GM+4*jj+2}, v4
        v_xor_b32 v7, v{GM+4*jj+3}, v5
        v_or3_b32 v10, v10, v6, v7
        """)
    e(f"""
    v_cmp_ne_u32 vcc, 0, v10
    s_add_u32 s68, s68, 1
    s_cmp_ge_u32 s68, {SPIN_MAX}
    s_cbranch_scc1 L_q_poll2done
    s_cbranch_vccnz L_q_poll2
    L_q_poll2done:
    s_mov_b32 s58, {LOG2E}
    """)
    stamp(8)
    e(f"v_max_f32 v6, v{GM}, v{GM+4}")
    for jj in range(2, 8):
        e(f"v_max_f32 v6, v6, v{GM+4*jj}")
    for jj in range(8):
        e(f"""
        v_sub_f32 v{GM+4*jj}, v{GM+4*jj}, v6
        v_mul_f32 v{GM+4*jj}, s58, v{GM+4*jj}
        v_exp_f32 v{GM+4*jj}, v{GM+4*jj}
        """)
    e("""
    s_nop 0
    v_mov_b32 v2, 0
    v_mov_b32 v3, 0
    v_mov_b32 v7, 0
    """)
    for jj in range(8):
        e(f"""
        v_fmac_f32 v2, v{GM+4*jj}, v{GO+4*jj}
        v_fmac_f32 v3, v{GM+4*jj}, v{GO+4*jj+1}
        v_fmac_f32 v7, v{GM+4*jj}, v{GM+4*jj+1}
        """)
    e(f"""
    v_rcp_f32 v7, v7
    s_nop 0
    v_mul_f32 v2, v2, v7
    v_mul_f32 v3, v3, v7
    v_cvt_pk_bf16_f32 v6, v2, v3
    v_lshlrev_b32 v2, 16, v6
    v_and_b32 v3, 0xffff0000, v6
    v_lshlrev_b32 v8, 3, v1
    ds_write_b64 v8, v[2:3] offset:{L_OF}
    s_mov_b64 exec, -1
    """)
    signal(5)
    e(f"""
    L_q_skip1:
    s_mov_b32 s66, -1
    s_mov_b32 s67, 0xff
    v_lshlrev_b32 v9, 4, v0
    v_lshlrev_b32 v8, 3, v0
    s_cmp_lg_u32 s51, 0
    s_cbranch_scc1 L_q_nopub
    """)
    wait_cnt(6, 4)
    stamp(9)
    e("s_mov_b64 exec, s[66:67]")
    for p in range(24):
        e(f"ds_read_b64 v[{16+2*p}:{17+2*p}], v8 offset:{L_P2 + p*320}")
    e("s_waitcnt lgkmcnt(0)")
    e("v_add_f32 v2, v16, v18")
    e("v_add_f32 v3, v17, v19")
    for p in range(2, 24):
        e(f"v_add_f32 v2, v2, v{16+2*p}")
        e(f"v_add_f32 v3, v3, v{17+2*p}")
    e(f"""
    v_mov_b32 v4, v12
    v_xor_b32 v5, {TAGX}, v12
    s_lshl_b32 s52, s49, 5
    s_add_u32 s52, s52, s48
    s_lshl_b32 s52, s52, 10
    s_add_u32 s52, s52, {WS_F}
    buffer_store_dwordx4 v[2:5], v9, s[44:47], s52 offen sc1
    L_q_nopub:
    s_mov_b64 exec, s[66:67]
    """)
    stamp(10)
    e(f"""
    s_cmp_lg_u32 s48, s49
    s_cbranch_scc1 L_q_end
    s_lshl_b32 s52, s49, 5
    s_lshl_b32 s53, s51, 3
    s_add_u32 s52, s52, s53
    s_lshl_b32 s52, s52, 10
    s_add_u32 s52, s52, {WS_F}
    s_lshl_b32 s53, s51, 5
    v_mov_b32 v14, s53
    s_mov_b32 s68, 0
    L_r_poll:
    s_mov_b32 s53, s52
    buffer_load_dwordx4 v[48:51], v14, s[40:43], 0 offen sc1
    buffer_load_dwordx4 v[52:55], v14, s[40:43], 0 offen offset:16 sc1
    """)
    for hh in range(8):
        e(f"buffer_load_dwordx4 v[{16+4*hh}:{19+4*hh}], v9, s[44:47], s53 offen sc1")
        if hh < 7:
            e("s_add_u32 s53, s53, 1024")
    e("s_waitcnt vmcnt(0)")
    e("v_mov_b32 v10, 0")
    for hh in range(8):
        e(f"""
        v_xor_b32 v6, v{16+4*hh+2}, v{48+hh}
        v_xor_b32 v7, {TAGX}, v{48+hh}
        v_xor_b32 v7, v{16+4*hh+3}, v7
        v_or3_b32 v10, v10, v6, v7
        """)
    e(f"""
    v_cmp_ne_u32 vcc, 0, v10
    s_add_u32 s68, s68, 1
    s_cmp_ge_u32 s68, {SPIN_MAX}
    s_cbranch_scc1 L_r_polldone
    s_cbranch_vccnz L_r_poll
    L_r_polldone:
    """)
    stamp(11)
    e("""
    v_add_f32 v2, v16, v20
    v_add_f32 v3, v17, v21
    """)
    for hh in range(2, 8):
        e(f"v_add_f32 v2, v2, v{16+4*hh}")
        e(f"v_add_f32 v3, v3, v{17+4*hh}")
    e(f"""
    s_mul_i32 s53, s51, 320
    v_add_u32 v4, s53, v8
    ds_write_b64 v4, v[2:3] offset:{L_FR}
    s_mov_b64 exec, -1
    """)
    signal(7)
    e(f"""
    s_cmp_lg_u32 s51, 0
    s_cbranch_scc1 L_q_end
    """)
    wait_cnt(7, 4)
    e(f"""
    s_mov_b64 exec, s[66:67]
    ds_read_b64 v[16:17], v8 offset:{L_FR}
    ds_read_b64 v[18:19], v8 offset:{L_FR+320}
    ds_read_b64 v[20:21], v8 offset:{L_FR+640}
    ds_read_b64 v[22:23], v8 offset:{L_FR+960}
    s_waitcnt lgkmcnt(0)
    v_add_f32 v2, v16, v18
    v_add_f32 v3, v17, v19
    v_add_f32 v2, v2, v20
    v_add_f32 v3, v3, v21
    v_add_f32 v2, v2, v22
    v_add_f32 v3, v3, v23
    v_cvt_pk_bf16_f32 v2, v2, v3
    v_lshlrev_b32 v8, 2, v0
    s_mul_i32 s53, s49, 160
    buffer_store_dword v2, v8, s[36:39], s53 offen
    s_waitcnt vmcnt(0)
    """)
    stamp(12)
    e("L_q_end:")
    stamp_out(0, "L_so0")
    e("s_endpgm")

    K0 = 16
    QBV = 64
    e(f"""
    L_krole:
    v_and_b32 v2, 15, v0
    v_lshrrev_b32 v3, 4, v0
    v_mul_u32_u24 v2, 384, v2
    v_lshlrev_b32 v10, 4, v3
    v_add_u32 v2, v2, v10
    s_lshl_b32 s53, s49, 7
    s_lshl_b32 s52, s51, 5
    s_add_u32 s53, s53, s52
    s_add_u32 s53, s53, 3072
    s_mul_i32 s53, s53, 384
    s_mul_i32 s52, s48, 1572864
    s_add_u32 s53, s53, s52
    s_barrier
    ; B0a
    """)
    if opt.get("kgate", 0) == 1:
        wait_cnt(1, 4)
    elif opt.get("kgate", 0) > 1:
        e(f"s_sleep {opt.get('kgate')}")
    for t in range(2):
        for s in range(6):
            r = K0 + (t * 6 + s) * 4
            if KD and t * 6 + s >= KD:
                e(f"s_waitcnt vmcnt({KD - 1})")
            e(f"buffer_load_dwordx4 v[{r}:{r+3}], v2, s[20:23], s53 offen offset:{s*64} nt")
        if t == 0:
            e("s_add_u32 s53, s53, 6144")
    signal(0)
    stamp(1)
    wait_cnt(2, 2)
    stamp(2)
    e(f"""
    v_lshrrev_b32 v3, 4, v0
    v_lshlrev_b32 v3, 4, v3
    """)
    for s in range(6):
        e(f"ds_read_b128 v[{QBV+4*s}:{QBV+4*s+3}], v3 offset:{L_QB + s*64}")
    e("s_waitcnt vmcnt(0) lgkmcnt(0)")
    for t in range(2):
        for s in range(6):
            r = K0 + (t * 6 + s) * 4
            c = "0" if s == 0 else f"v[{8+4*t}:{11+4*t}]"
            e(f"v_mfma_f32_16x16x32_bf16 v[{8+4*t}:{11+4*t}], v[{r}:{r+3}], v[{QBV+4*s}:{QBV+4*s+3}], {c}")
    e(f"""
    s_mov_b32 s56, {SCALE}
    s_nop 7
    s_nop 3
    """)
    for q in range(4):
        a = 8 + 2 * q
        e(f"""
        v_cvt_pk_bf16_f32 v2, v{a}, v{a+1}
        v_lshlrev_b32 v{a}, 16, v2
        v_and_b32 v{a+1}, 0xffff0000, v2
        v_mul_f32 v{a}, s56, v{a}
        v_mul_f32 v{a+1}, s56, v{a+1}
        v_cvt_pk_bf16_f32 v2, v{a}, v{a+1}
        v_lshlrev_b32 v{a}, 16, v2
        v_and_b32 v{a+1}, 0xffff0000, v2
        """)
    e(f"""
    v_lshrrev_b32 v3, 4, v0
    v_lshlrev_b32 v3, 4, v3
    s_lshl_b32 s52, s51, 7
    v_add_u32 v3, s52, v3
    s_mov_b32 s66, 0x00010001
    s_mov_b32 s67, 0x00010001
    s_mov_b64 exec, s[66:67]
    ds_write_b128 v3, v[8:11] offset:{L_SC}
    ds_write_b128 v3, v[12:15] offset:{L_SC+64}
    s_mov_b64 exec, -1
    """)
    signal(3)
    stamp(3)
    stamp_out(1, "L_so1")
    e("s_endpgm")

    V0 = 16
    WO0 = 80
    P0 = 112

    def v_loads():
        e(f"""
        v_mul_u32_u24 v1, 12, v0
        s_lshl_b32 s53, s49, 7
        s_lshl_b32 s52, s51, 5
        s_add_u32 s53, s53, s52
        s_add_u32 s53, s53, 3072
        s_mul_i32 s53, s53, 384
        s_mul_i32 s52, s48, 1572864
        s_add_u32 s53, s53, s52
        """)
        for i in range(16):
            r = V0 + 4 * i
            if VD and i >= VD:
                e(f"s_waitcnt vmcnt({VD - 1})")
            e(f"buffer_load_dwordx3 v[{r}:{r+2}], v1, s[24:27], s53 offen offset:{(i % 4) * 768} nt")
            if i % 4 == 3 and i < 15:
                e("s_add_u32 s53, s53, 3072")

    def wo_loads():
        e(f"""
        v_mul_u32_u24 v2, 205, v0
        v_lshrrev_b32 v2, 11, v2
        v_mul_u32_u24 v3, 10, v2
        v_sub_u32 v3, v0, v3
        v_mul_u32_u24 v4, 1280, v2
        v_lshlrev_b32 v5, 4, v3
        v_add_u32 v4, v4, v5
        v_cmp_gt_u32 vcc, 60, v0
        v_mov_b32 v5, 0x7ffffff0
        s_nop 1
        v_cndmask_b32 v4, v5, v4, vcc
        s_mul_i32 s52, s48, 192
        s_mul_i32 s53, s51, 48
        s_add_u32 s52, s52, s53
        s_mul_i32 s52, s52, 1280
        s_mul_i32 s53, s49, 160
        s_add_u32 s52, s52, s53
        """)
        for i in range(8):
            r = WO0 + 4 * i
            if VD:
                e(f"s_waitcnt vmcnt({VD - 1})")
            e(f"buffer_load_dwordx4 v[{r}:{r+3}], v4, s[32:35], s52 offen nt")
            if i < 7:
                e("s_add_u32 s52, s52, 7680")

    e(f"""
    L_vrole:
    s_barrier
    ; B0a
    """)
    if opt.get("vgate", 1):
        wait_cnt(0, 4)
    stamp(1)
    v_loads()
    if wwhen == 0:
        wo_loads()
    stamp(2)
    if wwhen == 2:
        wait_cnt(2, 2)
        wo_loads()
    wait_cnt(3, 4)
    stamp(3)
    if wwhen == 3:
        wo_loads()
    e(f"""
    v_lshlrev_b32 v8, 3, v0
    ds_read_b64 v[8:9], v8 offset:{L_SC}
    v_lshrrev_b32 v10, 5, v0
    v_lshlrev_b32 v10, 2, v10
    s_lshl_b32 s52, s51, 7
    v_add_u32 v10, s52, v10
    """)
    for i in range(16):
        e(f"ds_read_b32 v{P0+i}, v10 offset:{L_SC + i*8}")
    e(f"""
    s_waitcnt lgkmcnt(0)
    v_max_f32 v8, v8, v9
    s_nop 1
    v_max_f32_dpp v8, v8, v8 row_shr:1 row_mask:0xf bank_mask:0xf
    s_nop 1
    v_max_f32_dpp v8, v8, v8 row_shr:2 row_mask:0xf bank_mask:0xf
    s_nop 1
    v_max_f32_dpp v8, v8, v8 row_shr:4 row_mask:0xf bank_mask:0xf
    s_nop 1
    v_max_f32_dpp v8, v8, v8 row_shr:8 row_mask:0xf bank_mask:0xf
    s_nop 1
    v_max_f32_dpp v8, v8, v8 row_bcast:15 row_mask:0xa bank_mask:0xf
    s_nop 1
    v_max_f32_dpp v8, v8, v8 row_bcast:31 row_mask:0xc bank_mask:0xf
    s_nop 1
    v_readlane_b32 s57, v8, 63
    s_mov_b32 s58, {LOG2E}
    s_nop 1
    v_mov_b32 v9, 0
    """)
    for i in range(16):
        e(f"""
        v_subrev_f32 v{P0+i}, s57, v{P0+i}
        v_mul_f32 v{P0+i}, s58, v{P0+i}
        v_exp_f32 v{P0+i}, v{P0+i}
        """)
    e("s_nop 0")
    for i in range(16):
        e(f"v_add_f32 v9, v9, v{P0+i}")
    e("""
    v_mov_b32 v2, 0
    v_mov_b32 v3, 0
    v_mov_b32 v4, 0
    v_mov_b32 v5, 0
    v_mov_b32 v6, 0
    v_mov_b32 v7, 0
    """)
    stamp(4)
    for i in range(16):
        e(f"s_waitcnt vmcnt({8 + 15 - i})")
        for d in range(3):
            r = V0 + 4 * i + d
            e(f"""
            v_lshlrev_b32 v10, 16, v{r}
            v_and_b32 v11, 0xffff0000, v{r}
            v_fmac_f32 v{2+2*d}, v{P0+i}, v10
            v_fmac_f32 v{3+2*d}, v{P0+i}, v11
            """)
    stamp(5)
    e(f"""
    v_and_b32 v1, 31, v0
    v_lshrrev_b32 v10, 5, v0
    v_mul_u32_u24 v1, 24, v1
    v_mul_u32_u24 v11, 768, v10
    v_add_u32 v1, v1, v11
    s_mul_i32 s52, s51, 1536
    v_add_u32 v1, s52, v1
    ds_write_b64 v1, v[2:3] offset:{L_OP}
    ds_write_b64 v1, v[4:5] offset:{L_OP+8}
    ds_write_b64 v1, v[6:7] offset:{L_OP+16}
    v_lshlrev_b32 v10, 2, v10
    s_lshl_b32 s52, s51, 3
    v_add_u32 v10, s52, v10
    v_mov_b32 v11, s57
    v_mov_b32 v12, {L_LS+32}
    s_mov_b32 s66, 1
    s_mov_b32 s67, 1
    s_mov_b64 exec, s[66:67]
    ds_write_b32 v10, v9 offset:{L_LS}
    ds_write_b32 v12, v11
    s_mov_b64 exec, -1
    """)
    signal(4)
    wait_cnt(5, 2)
    stamp(6)
    e(f"""
    v_mul_u32_u24 v2, 205, v0
    v_lshrrev_b32 v2, 11, v2
    v_mul_u32_u24 v3, 10, v2
    v_sub_u32 v3, v0, v3
    v_lshlrev_b32 v4, 2, v2
    s_mul_i32 s52, s51, 192
    v_add_u32 v4, s52, v4
    """)
    OV = 16
    AC = 24
    for i in range(8):
        e(f"ds_read_b32 v{OV+i}, v4 offset:{L_OF + i*24}")
    for c in range(8):
        e(f"v_mov_b32 v{AC+c}, 0")
    e("s_waitcnt vmcnt(0) lgkmcnt(0)")
    for i in range(8):
        for d in range(4):
            r = WO0 + 4 * i + d
            e(f"""
            v_lshlrev_b32 v10, 16, v{r}
            v_and_b32 v11, 0xffff0000, v{r}
            v_fmac_f32 v{AC+2*d}, v{OV+i}, v10
            v_fmac_f32 v{AC+2*d+1}, v{OV+i}, v11
            """)
    e(f"""
    v_mul_u32_u24 v4, 320, v2
    v_lshlrev_b32 v5, 5, v3
    v_add_u32 v4, v4, v5
    s_mul_i32 s52, s51, 1920
    v_add_u32 v4, s52, v4
    s_mov_b32 s66, -1
    s_mov_b32 s67, 0x0fffffff
    s_mov_b64 exec, s[66:67]
    ds_write_b128 v4, v[{AC}:{AC+3}] offset:{L_P2}
    ds_write_b128 v4, v[{AC+4}:{AC+7}] offset:{L_P2+16}
    s_mov_b64 exec, -1
    """)
    signal(6)
    stamp(7)
    stamp_out(2, "L_so2")
    e("L_end:")
    e("s_endpgm")

    out = HEADER
    out += f"; @launch grid=(256,1,1) block=(768,1,1) lds={LDS_BYTES}\n"
    out += f""".amdgcn_target "amdgcn-amd-amdhsa--gfx950"
.text
.globl {NAME}_kernel
.p2align 8
.type {NAME}_kernel,@function
{NAME}_kernel:
{e.text()}.section .rodata,"a"
.p2align 6
.amdhsa_kernel {NAME}_kernel
  .amdhsa_next_free_vgpr 128
  .amdhsa_next_free_sgpr 96
  .amdhsa_accum_offset 128
  .amdhsa_group_segment_fixed_size 0
  .amdhsa_kernarg_size 64
  .amdhsa_user_sgpr_count 2
  .amdhsa_user_sgpr_kernarg_segment_ptr 1
  .amdhsa_system_sgpr_workgroup_id_x 1
  .amdhsa_float_denorm_mode_32 3
.end_amdhsa_kernel
"""
    return out


if __name__ == "__main__":
    opt = {}
    outp = f"cdna_kernels/{NAME}.s"
    for a in sys.argv[1:]:
        k, v = a.split("=")
        if k == "out":
            outp = v
        else:
            opt[k] = int(v)
    open(outp, "w").write(gen(opt))
    print("wrote", outp)
```

```python
import sys
import struct

NAME = "standalone__sliding_block_cached__decode"

HEADER = """; Kernarg layout for this problem (64 bytes, ptrs only, base s[0:1]):
;   offset  40: d_out     shape=(1, 1, 640) dtype=bfloat16 (2 bytes/elem)
"""

L_QP = 0x0000
L_QB = 0x1800
L_NONCE = 0x1A00
L_CNT = 0x1A20
L_SC = 0x1B00
L_LS = 0x1D00
L_OF = 0x1E00
L_OP = 0x2200
L_P2 = 0x3A00
L_FR = 0x5800
L_KT = 0x6000
LDS_BYTES = 0x6000 + 4 * 32 * 400

WS_Q = 0x0
WS_O = 0x80000
WS_F = 0x100000
WS_BYTES = 0x400000
DELTA = 0x200000

TAGX = 0x9E3779B9
SCALE = 0x3D93CD3A
LOG2E = 0x3FB8AA3B
SPIN_MAX = 1 << 16


class E:
    def __init__(self):
        self.l = []

    def __call__(self, s):
        for line in s.strip("\n").split("\n"):
            t = line.strip()
            if not t:
                continue
            if t.endswith(":") and " " not in t:
                self.l.append(t)
            else:
                self.l.append("    " + t)

    def text(self):
        return "\n".join(self.l) + "\n"


def gen(opt):
    assert struct.unpack("<I", struct.pack("<f", 192 ** -0.5))[0] == SCALE
    e = E()
    ST = opt.get("stamps", 0)
    wwhen = opt.get("wwhen", 2)
    KD = opt.get("kd", 0)
    BM = opt.get("bm", 15)
    NT = "nt" if opt.get("nt", 1) else ""
    PF = "" if opt.get("plainpub", 0) else "sc1"
    VD = opt.get("vd", 0)

    def stamp(idx):
        if ST:
            e(f"""
            s_memrealtime s[72:73]
            s_waitcnt lgkmcnt(0)
            s_mov_b32 s{74+idx}, s72
            """)

    def stamp_out(part, lab):
        if ST:
            e(f"""
            s_mov_b64 exec, -1
            s_cmp_lg_u32 s51, 0
            s_cbranch_scc1 {lab}
            s_lshl_b32 s72, s2, 8
            s_add_u32 s72, s72, {0x180000 + part*80}
            v_mov_b32 v3, 0
            s_mov_b64 exec, 1
            """)
            for i in range(20):
                e(f"v_mov_b32 v2, s{74+i}")
                e(f"buffer_store_dword v2, v3, s[44:47], s72 offen offset:{i*4}")
                e("s_nop 1")
            e("s_waitcnt vmcnt(0)")
            e(f"{lab}:")

    lab_n = [0]

    def signal(k):
        e(f"""
        v_mov_b32 v126, {L_CNT + 4*k}
        v_mov_b32 v127, 1
        s_mov_b64 s[68:69], exec
        s_mov_b64 exec, 1
        ds_add_u32 v126, v127
        s_mov_b64 exec, s[68:69]
        """)

    def wait_cnt(k, n):
        lab_n[0] += 1
        a = f"L_w{lab_n[0]}"
        e(f"""
        v_mov_b32 v126, {L_CNT + 4*k}
        s_mov_b32 s69, 0
        {a}:
        ds_read_b32 v127, v126
        s_waitcnt lgkmcnt(0)
        v_readfirstlane_b32 s68, v127
        s_add_u32 s69, s69, 1
        s_cmp_ge_u32 s69, {SPIN_MAX * 16}
        s_cbranch_scc1 {a}d
        s_cmp_lt_u32 s68, {n}
        s_cbranch_scc1 {a}
        {a}d:
        """)

    e(f"""
    s_cmp_ge_u32 s2, 256
    s_cbranch_scc1 L_end
    s_load_dwordx16 s[4:19], s[0:1], 0
    s_memrealtime s[70:71]
    v_lshrrev_b32 v1, 6, v0
    v_and_b32 v0, 63, v0
    s_and_b32 s48, s2, 31
    s_lshr_b32 s49, s2, 5
    v_readfirstlane_b32 s50, v1
    s_waitcnt lgkmcnt(0)
    """)
    srds = [(20, 6, 50331648), (24, 8, 50331648), (28, 10, 7864320), (32, 12, 7864320),
            (36, 14, 1280), (40, 16, 256), (44, 18, WS_BYTES)]
    for d, p, n in srds:
        e(f"""
        s_mov_b32 s{d}, s{p}
        s_and_b32 s{d+1}, s{p+1}, 0xffff
        s_mov_b32 s{d+2}, {n}
        s_mov_b32 s{d+3}, 0x00020000
        """)
    if ST:
        for i in range(20):
            e(f"s_mov_b32 s{74+i}, 0")
    stamp(0)
    e("""
    s_and_b32 s51, s50, 3
    s_cmp_ge_u32 s50, 12
    s_cbranch_scc1 L_wrole
    s_cmp_ge_u32 s50, 8
    s_cbranch_scc1 L_vrole
    s_cmp_ge_u32 s50, 4
    s_cbranch_scc1 L_krole
    """)

    WQ0 = 16
    e(f"""
    s_cmp_lg_u32 s51, 0
    s_cbranch_scc1 L_q_nononce
    s_or_b32 s70, s70, 1
    v_mov_b32 v12, s70
    v_mov_b32 v13, 0
    s_lshl_b32 s71, s48, 2
    s_add_u32 s71, s71, 128
    v_mov_b32 v14, s71
    v_mov_b32 v2, 0
    v_lshlrev_b32 v3, 2, v0
    s_mov_b64 exec, 1
    buffer_atomic_cmpswap v[12:13], v14, s[40:43], 0 offen sc0 sc1
    s_mov_b64 exec, 0xffff
    ds_write_b32 v3, v2 offset:{L_CNT}
    s_mov_b64 exec, -1
    L_q_nononce:
    s_mul_i32 s52, s49, 160
    s_mul_i32 s53, s51, 40
    s_add_u32 s52, s52, s53
    s_add_u32 s54, s4, s52
    s_addc_u32 s55, s5, 0
    s_load_dwordx8 s[56:63], s[54:55], 0
    s_load_dwordx2 s[64:65], s[54:55], 32
    v_and_b32 v1, 31, v0
    v_lshrrev_b32 v9, 5, v0
    v_mul_u32_u24 v1, 12, v1
    v_mul_u32_u24 v3, 0x3000, v9
    v_add_u32 v1, v1, v3
    s_mul_i32 s52, s49, 80
    s_mul_i32 s53, s51, 20
    s_add_u32 s52, s52, s53
    s_mul_i32 s52, s52, 12288
    s_mul_i32 s53, s48, 384
    s_add_u32 s52, s52, s53
    """)
    for i in range(10):
        e(f"buffer_load_dwordx3 v[{WQ0+4*i}:{WQ0+4*i+2}], v1, s[28:31], s52 offen {NT}")
        if i < 9:
            e("s_add_u32 s52, s52, 24576")
    stamp(1)
    e(f"""
    s_waitcnt lgkmcnt(0)
    s_barrier
    ; B0a
    v_cmp_gt_u32 vcc, 32, v0
    v_mov_b32 v11, 0
    v_mov_b32 v2, 0
    v_cndmask_b32 v9, v11, 16, vcc
    v_mov_b32 v3, 0
    v_mov_b32 v4, 0
    v_mov_b32 v5, 0
    v_mov_b32 v6, 0
    v_mov_b32 v7, 0
    s_waitcnt lgkmcnt(0)
    """)
    for i in range(10):
        e(f"s_waitcnt vmcnt({9 - i})")
        e(f"""
        v_lshlrev_b32_e64 v8, v9, s{56+i}
        v_and_b32 v8, 0xffff0000, v8
        """)
        for d in range(3):
            r = WQ0 + 4 * i + d
            e(f"""
            v_lshlrev_b32 v10, 16, v{r}
            v_and_b32 v11, 0xffff0000, v{r}
            v_fmac_f32 v{2+2*d}, v8, v10
            v_fmac_f32 v{3+2*d}, v8, v11
            """)
    stamp(2)
    e(f"""
    v_and_b32 v1, 31, v0
    v_lshrrev_b32 v9, 5, v0
    v_mul_u32_u24 v1, 24, v1
    v_mul_u32_u24 v9, 768, v9
    v_add_u32 v1, v1, v9
    s_mul_i32 s52, s51, 1536
    v_add_u32 v1, s52, v1
    ds_write_b64 v1, v[2:3] offset:{L_QP}
    ds_write_b64 v1, v[4:5] offset:{L_QP+8}
    ds_write_b64 v1, v[6:7] offset:{L_QP+16}
    s_cmp_lg_u32 s51, 0
    s_cbranch_scc1 L_q_nononce2
    v_cmp_eq_u32 vcc, 0, v12
    v_mov_b32 v13, s70
    v_mov_b32 v14, {L_NONCE}
    v_cndmask_b32 v12, v12, v13, vcc
    s_mov_b64 exec, 1
    ds_write_b32 v14, v12
    s_mov_b64 exec, -1
    L_q_nononce2:
    """)
    signal(1)
    wait_cnt(1, 4)
    stamp(3)
    G0 = 16
    e(f"""
    v_mov_b32 v14, {L_NONCE}
    ds_read_b32 v12, v14
    s_lshr_b32 s60, s51, 1
    s_and_b32 s61, s51, 1
    s_cmp_eq_u32 s61, 1
    s_cselect_b32 s67, 0, -1
    s_mov_b32 s66, -1
    s_mov_b64 exec, s[66:67]
    s_lshl_b32 s52, s61, 6
    v_add_u32 v1, s52, v0
    v_lshlrev_b32 v8, 3, v1
    """)
    for p in range(8):
        e(f"ds_read_b64 v[{G0+2*p}:{G0+2*p+1}], v8 offset:{L_QP + p*768}")
    e("s_waitcnt lgkmcnt(0)")
    e(f"v_add_f32 v2, v{G0}, v{G0+2}")
    e(f"v_add_f32 v3, v{G0+1}, v{G0+3}")
    for p in range(2, 8):
        e(f"v_add_f32 v2, v2, v{G0+2*p}")
        e(f"v_add_f32 v3, v3, v{G0+2*p+1}")
    e(f"""
    v_mov_b32 v4, v12
    v_xor_b32 v5, {TAGX}, v12
    v_lshlrev_b32 v9, 4, v1
    s_mul_i32 s52, s48, 12288
    s_mul_i32 s53, s49, 1536
    s_add_u32 s53, s53, s52
    s_cmp_eq_u32 s60, 0
    s_cbranch_scc1 L_q_pubA1
    s_add_u32 s53, s53, {DELTA}
    buffer_store_dwordx4 v[2:5], v9, s[44:47], s53 offen sc1
    s_mov_b64 exec, -1
    s_branch L_q_afterq
    L_q_pubA1:
    buffer_store_dwordx4 v[2:5], v9, s[44:47], s53 offen
    """)
    stamp(4)
    PD = opt.get("pd", 3)
    sets = [16 + 32 * k for k in range(PD)]

    def p1_issue(base):
        e(f"""
        s_and_b32 s53, s68, {BM}
        s_cmp_eq_u32 s53, {BM}
        s_cselect_b32 s53, {DELTA}, 0
        s_add_u32 s53, s53, s52
        s_add_u32 s68, s68, 1
        """)
        for jj in range(8):
            e(f"buffer_load_dwordx4 v[{base+4*jj}:{base+4*jj+3}], v9, s[44:47], s53 offen sc1")
            if jj < 7:
                e("s_add_u32 s53, s53, 1536")

    e("s_mov_b32 s68, 0")
    for k in range(PD):
        p1_issue(sets[k])
    e("L_q_poll1:")
    for k in range(PD):
        base = sets[k]
        e(f"s_waitcnt vmcnt({8 * (PD - 1)})")
        e("v_mov_b32 v10, 0")
        for jj in range(8):
            e(f"""
            v_xor_b32 v6, v{base+4*jj+2}, v4
            v_xor_b32 v7, v{base+4*jj+3}, v5
            v_or3_b32 v10, v10, v6, v7
            """)
        e(f"""
        v_cmp_ne_u32 vcc, 0, v10
        s_cmp_ge_u32 s68, {SPIN_MAX}
        s_cbranch_scc1 L_q_p1ok{k}
        s_cbranch_vccz L_q_p1ok{k}
        """)
        p1_issue(base)
    e("s_branch L_q_poll1")
    for k in range(PD):
        base = sets[k]
        e(f"L_q_p1ok{k}:")
        e(f"v_add_f32 v2, v{base}, v{base+4}")
        e(f"v_add_f32 v3, v{base+1}, v{base+5}")
        for jj in range(2, 8):
            e(f"v_add_f32 v2, v2, v{base+4*jj}")
            e(f"v_add_f32 v3, v3, v{base+4*jj+1}")
        if k < PD - 1:
            e("s_branch L_q_p1done")
    e("L_q_p1done:")
    stamp(5)
    e(f"""
    v_cvt_pk_bf16_f32 v2, v2, v3
    v_lshlrev_b32 v8, 2, v1
    ds_write_b32 v8, v2 offset:{L_QB}
    s_mov_b64 exec, -1
    """)
    signal(2)
    e("L_q_afterq:")
    wait_cnt(4, 4)
    e("s_waitcnt vmcnt(0)")
    stamp(6)
    GO = 16
    GM = 48
    e(f"""
    s_mov_b64 exec, s[66:67]
    v_lshlrev_b32 v8, 3, v1
    v_mov_b32 v14, {L_LS}
    ds_read_b128 v[{GM}:{GM+3}], v14
    ds_read_b128 v[{GM+4}:{GM+7}], v14 offset:16
    ds_read_b32 v15, v14 offset:32
    """)
    for p in range(8):
        e(f"ds_read_b64 v[{GO+2*p}:{GO+2*p+1}], v8 offset:{L_OP + p*768}")
    e("s_waitcnt lgkmcnt(0)")
    e(f"v_add_f32 v2, v{GO}, v{GO+2}")
    e(f"v_add_f32 v3, v{GO+1}, v{GO+3}")
    for p in range(2, 8):
        e(f"v_add_f32 v2, v2, v{GO+2*p}")
        e(f"v_add_f32 v3, v3, v{GO+2*p+1}")
    e(f"v_add_f32 v7, v{GM}, v{GM+1}")
    for p in range(2, 8):
        e(f"v_add_f32 v7, v7, v{GM+p}")
    e(f"""
    s_lshl_b32 s52, s48, 14
    s_add_u32 s52, s52, {WS_O}
    s_lshl_b32 s53, s49, 11
    s_add_u32 s53, s53, s52
    v_mov_b32 v13, 1536
    v_mov_b32 v{GM}, v15
    v_mov_b32 v{GM+1}, v7
    v_mov_b32 v{GM+2}, v4
    v_mov_b32 v{GM+3}, v5
    s_cmp_eq_u32 s60, 0
    s_cbranch_scc1 L_q_pubA2
    s_add_u32 s53, s53, {DELTA}
    buffer_store_dwordx4 v[2:5], v9, s[44:47], s53 offen sc1
    s_mov_b64 exec, -1
    s_cmp_lg_u32 s61, 0
    s_cbranch_scc1 L_q_skip1
    s_mov_b64 exec, 1
    buffer_store_dwordx4 v[{GM}:{GM+3}], v13, s[44:47], s53 offen sc1
    s_mov_b64 exec, -1
    s_branch L_q_skip1
    L_q_pubA2:
    buffer_store_dwordx4 v[2:5], v9, s[44:47], s53 offen
    s_cmp_lg_u32 s61, 0
    s_cbranch_scc1 L_q_noml
    s_mov_b64 exec, 1
    buffer_store_dwordx4 v[{GM}:{GM+3}], v13, s[44:47], s53 offen
    s_mov_b64 exec, s[66:67]
    L_q_noml:
    """)
    stamp(7)
    e(f"""
    s_mov_b32 s68, 0
    L_q_poll2:
    s_and_b32 s53, s68, {BM}
    s_cmp_eq_u32 s53, {BM}
    s_cselect_b32 s53, {DELTA}, 0
    s_add_u32 s53, s53, s52
    """)
    for jj in range(8):
        e(f"buffer_load_dwordx4 v[{GO+4*jj}:{GO+4*jj+3}], v9, s[44:47], s53 offen sc1")
        e(f"buffer_load_dwordx4 v[{GM+4*jj}:{GM+4*jj+3}], v13, s[44:47], s53 offen sc1")
        if jj < 7:
            e("s_add_u32 s53, s53, 2048")
    e("s_waitcnt vmcnt(0)")
    e("v_mov_b32 v10, 0")
    for jj in range(8):
        e(f"""
        v_xor_b32 v6, v{GO+4*jj+2}, v4
        v_xor_b32 v7, v{GO+4*jj+3}, v5
        v_or3_b32 v10, v10, v6, v7
        v_xor_b32 v6, v{GM+4*jj+2}, v4
        v_xor_b32 v7, v{GM+4*jj+3}, v5
        v_or3_b32 v10, v10, v6, v7
        """)
    e(f"""
    v_cmp_ne_u32 vcc, 0, v10
    s_add_u32 s68, s68, 1
    s_cmp_ge_u32 s68, {SPIN_MAX}
    s_cbranch_scc1 L_q_poll2done
    s_cbranch_vccnz L_q_poll2
    L_q_poll2done:
    s_mov_b32 s58, {LOG2E}
    """)
    stamp(8)
    e(f"v_max_f32 v6, v{GM}, v{GM+4}")
    for jj in range(2, 8):
        e(f"v_max_f32 v6, v6, v{GM+4*jj}")
    for jj in range(8):
        e(f"""
        v_sub_f32 v{GM+4*jj}, v{GM+4*jj}, v6
        v_mul_f32 v{GM+4*jj}, s58, v{GM+4*jj}
        v_exp_f32 v{GM+4*jj}, v{GM+4*jj}
        """)
    e("""
    s_nop 0
    v_mov_b32 v2, 0
    v_mov_b32 v3, 0
    v_mov_b32 v7, 0
    """)
    for jj in range(8):
        e(f"""
        v_fmac_f32 v2, v{GM+4*jj}, v{GO+4*jj}
        v_fmac_f32 v3, v{GM+4*jj}, v{GO+4*jj+1}
        v_fmac_f32 v7, v{GM+4*jj}, v{GM+4*jj+1}
        """)
    e(f"""
    v_rcp_f32 v7, v7
    s_nop 0
    v_mul_f32 v2, v2, v7
    v_mul_f32 v3, v3, v7
    v_cvt_pk_bf16_f32 v6, v2, v3
    v_lshlrev_b32 v2, 16, v6
    v_and_b32 v3, 0xffff0000, v6
    v_lshlrev_b32 v8, 3, v1
    ds_write_b64 v8, v[2:3] offset:{L_OF}
    s_mov_b64 exec, -1
    """)
    signal(5)
    e(f"""
    L_q_skip1:
    s_mov_b32 s66, -1
    s_mov_b32 s67, 0xff
    v_lshlrev_b32 v9, 4, v0
    v_lshlrev_b32 v8, 3, v0
    s_cmp_lg_u32 s51, 0
    s_cbranch_scc1 L_q_nopub
    """)
    wait_cnt(6, 4)
    stamp(9)
    e("s_mov_b64 exec, s[66:67]")
    for p in range(24):
        e(f"ds_read_b64 v[{16+2*p}:{17+2*p}], v8 offset:{L_P2 + p*320}")
    e("s_waitcnt lgkmcnt(0)")
    e("v_add_f32 v2, v16, v18")
    e("v_add_f32 v3, v17, v19")
    for p in range(2, 24):
        e(f"v_add_f32 v2, v2, v{16+2*p}")
        e(f"v_add_f32 v3, v3, v{17+2*p}")
    e(f"""
    v_mov_b32 v4, v12
    v_xor_b32 v5, {TAGX}, v12
    s_lshl_b32 s52, s49, 5
    s_add_u32 s52, s52, s48
    s_lshl_b32 s52, s52, 10
    s_add_u32 s52, s52, {WS_F}
    buffer_store_dwordx4 v[2:5], v9, s[44:47], s52 offen sc1
    L_q_nopub:
    s_mov_b64 exec, s[66:67]
    """)
    stamp(10)
    e(f"""
    s_cmp_lg_u32 s48, s49
    s_cbranch_scc1 L_q_end
    s_lshl_b32 s52, s49, 5
    s_lshl_b32 s53, s51, 3
    s_add_u32 s52, s52, s53
    s_lshl_b32 s52, s52, 10
    s_add_u32 s52, s52, {WS_F}
    s_lshl_b32 s53, s51, 5
    s_add_u32 s53, s53, 128
    v_mov_b32 v14, s53
    s_mov_b32 s68, 0
    """)
    RD = opt.get("rd", 3)
    rsets = [16 + 40 * k for k in range(RD)]

    def r_issue(base):
        e(f"""
        s_mov_b32 s53, s52
        s_add_u32 s68, s68, 1
        buffer_load_dwordx4 v[{base+32}:{base+35}], v14, s[40:43], 0 offen sc1
        buffer_load_dwordx4 v[{base+36}:{base+39}], v14, s[40:43], 0 offen offset:16 sc1
        """)
        for hh in range(8):
            e(f"buffer_load_dwordx4 v[{base+4*hh}:{base+4*hh+3}], v9, s[44:47], s53 offen sc1")
            if hh < 7:
                e("s_add_u32 s53, s53, 1024")

    for k in range(RD):
        r_issue(rsets[k])
    e("L_r_poll:")
    for k in range(RD):
        base = rsets[k]
        e(f"s_waitcnt vmcnt({10 * (RD - 1)})")
        e("v_mov_b32 v10, 0")
        for hh in range(8):
            e(f"""
            v_xor_b32 v6, v{base+4*hh+2}, v{base+32+hh}
            v_xor_b32 v7, {TAGX}, v{base+32+hh}
            v_xor_b32 v7, v{base+4*hh+3}, v7
            v_or3_b32 v10, v10, v6, v7
            """)
        e(f"""
        v_cmp_ne_u32 vcc, 0, v10
        s_cmp_ge_u32 s68, {SPIN_MAX}
        s_cbranch_scc1 L_r_ok{k}
        s_cbranch_vccz L_r_ok{k}
        """)
        r_issue(base)
    e("s_branch L_r_poll")
    for k in range(RD):
        base = rsets[k]
        e(f"L_r_ok{k}:")
        e(f"v_add_f32 v2, v{base}, v{base+4}")
        e(f"v_add_f32 v3, v{base+1}, v{base+5}")
        for hh in range(2, 8):
            e(f"v_add_f32 v2, v2, v{base+4*hh}")
            e(f"v_add_f32 v3, v3, v{base+4*hh+1}")
        if k < RD - 1:
            e("s_branch L_r_done")
    e("L_r_done:")
    stamp(11)
    e(f"""
    s_mul_i32 s53, s51, 320
    v_add_u32 v4, s53, v8
    ds_write_b64 v4, v[2:3] offset:{L_FR}
    s_mov_b64 exec, -1
    """)
    signal(7)
    e(f"""
    s_cmp_lg_u32 s51, 0
    s_cbranch_scc1 L_q_end
    """)
    wait_cnt(7, 4)
    e(f"""
    s_mov_b64 exec, s[66:67]
    ds_read_b64 v[120:121], v8 offset:{L_FR}
    ds_read_b64 v[122:123], v8 offset:{L_FR+320}
    ds_read_b64 v[124:125], v8 offset:{L_FR+640}
    ds_read_b64 v[10:11], v8 offset:{L_FR+960}
    s_waitcnt lgkmcnt(0)
    v_add_f32 v2, v120, v122
    v_add_f32 v3, v121, v123
    v_add_f32 v2, v2, v124
    v_add_f32 v3, v3, v125
    v_add_f32 v2, v2, v10
    v_add_f32 v3, v3, v11
    v_cvt_pk_bf16_f32 v2, v2, v3
    v_lshlrev_b32 v8, 2, v0
    s_mul_i32 s53, s49, 160
    buffer_store_dword v2, v8, s[36:39], s53 offen
    s_waitcnt vmcnt(0)
    """)
    if opt.get("dbgtime", 0):
        e("""
        s_memrealtime s[72:73]
        s_waitcnt lgkmcnt(0)
        s_lshl_b32 s53, s49, 2
        v_mov_b32 v2, s72
        v_mov_b32 v3, s70
        v_mov_b32 v4, s53
        s_mov_b64 exec, 1
        buffer_store_dword v2, v4, s[40:43], 0 offen
        buffer_store_dword v3, v4, s[40:43], 0 offen offset:32
        s_waitcnt vmcnt(0)
        """)
    stamp(12)
    e("L_q_end:")
    stamp_out(0, "L_so0")
    e("s_endpgm")

    WO0 = 88

    def wo_loads():
        e(f"""
        v_mul_u32_u24 v2, 205, v0
        v_lshrrev_b32 v2, 11, v2
        v_mul_u32_u24 v3, 10, v2
        v_sub_u32 v3, v0, v3
        v_mul_u32_u24 v4, 1280, v2
        v_lshlrev_b32 v5, 4, v3
        v_add_u32 v4, v4, v5
        v_cmp_gt_u32 vcc, 60, v0
        v_mov_b32 v5, 0x7ffffff0
        s_nop 1
        v_cndmask_b32 v4, v5, v4, vcc
        s_mul_i32 s52, s48, 192
        s_mul_i32 s53, s51, 48
        s_add_u32 s52, s52, s53
        s_mul_i32 s52, s52, 1280
        s_mul_i32 s53, s49, 160
        s_add_u32 s52, s52, s53
        """)
        for i in range(8):
            r = WO0 + 4 * i
            if VD:
                e(f"s_waitcnt vmcnt({VD - 1})")
            e(f"buffer_load_dwordx4 v[{r}:{r+3}], v4, s[32:35], s52 offen {NT}")
            if i < 7:
                e("s_add_u32 s52, s52, 7680")


    K0 = 16
    QBV = 64
    e(f"""
    L_krole:
    """)
    if opt.get("pf", 0):
        e(f"""
        s_getpc_b64 s[62:63]
        L_pc:
        s_sub_u32 s62, s62, L_pc-{NAME}_kernel
        s_subb_u32 s63, s63, 0
        v_lshlrev_b32 v4, 6, v0
        s_lshl_b32 s52, s51, 12
        v_add_u32 v4, s52, v4
        v_min_u32 v4, L_end-{NAME}_kernel, v4
        global_load_dword v5, v4, s[62:63]
        """)
    e(f"""
    v_and_b32 v2, 15, v0
    v_lshrrev_b32 v3, 4, v0
    v_mul_u32_u24 v2, 384, v2
    v_lshlrev_b32 v10, 4, v3
    v_add_u32 v2, v2, v10
    s_lshl_b32 s53, s49, 7
    s_lshl_b32 s52, s51, 5
    s_add_u32 s53, s53, s52
    s_add_u32 s53, s53, 3072
    s_mul_i32 s53, s53, 384
    s_mul_i32 s52, s48, 1572864
    s_add_u32 s53, s53, s52
    s_barrier
    ; B0a
    """)
    if opt.get("kgate", 0) == 1:
        wait_cnt(1, 4)
    elif opt.get("kgate", 0) > 1:
        e(f"s_sleep {opt.get('kgate')}")
    e("v_lshlrev_b32 v3, 4, v0")
    for i in range(12):
        r = K0 + i * 4
        if KD and i >= KD:
            e(f"s_waitcnt vmcnt({KD - 1})")
        e(f"buffer_load_dwordx4 v[{r}:{r+3}], v3, s[20:23], s53 offen offset:{(i % 4)*1024} {NT}")
        if i % 4 == 3 and i < 11:
            e("s_add_u32 s53, s53, 4096")
    signal(0)
    stamp(1)
    e(f"""
    s_mul_i32 s52, s51, {32*400}
    s_add_u32 s52, s52, {L_KT}
    """)
    for i in range(12):
        r = K0 + i * 4
        e(f"""
        v_add_u32 v4, {64*i}, v0
        v_mul_u32_u24 v5, 2731, v4
        v_lshrrev_b32 v5, 16, v5
        v_add_u32 v4, v4, v5
        v_lshlrev_b32 v4, 4, v4
        v_add_u32 v4, s52, v4
        s_waitcnt vmcnt({11 - i})
        ds_write_b128 v4, v[{r}:{r+3}]
        """)
    e(f"""
    v_and_b32 v4, 15, v0
    v_lshrrev_b32 v5, 4, v0
    v_mul_u32_u24 v4, 400, v4
    v_lshlrev_b32 v5, 4, v5
    v_add_u32 v4, v4, v5
    v_add_u32 v4, s52, v4
    s_waitcnt lgkmcnt(0)
    """)
    for t in range(2):
        for s in range(6):
            r = K0 + (t * 6 + s) * 4
            e(f"ds_read_b128 v[{r}:{r+3}], v4 offset:{t*6400 + s*64}")
    wait_cnt(2, 2)
    stamp(2)
    e(f"""
    v_lshrrev_b32 v3, 4, v0
    v_lshlrev_b32 v3, 4, v3
    """)
    for s in range(6):
        e(f"ds_read_b128 v[{QBV+4*s}:{QBV+4*s+3}], v3 offset:{L_QB + s*64}")
    e("s_waitcnt lgkmcnt(0)")
    for t in range(2):
        for s in range(6):
            r = K0 + (t * 6 + s) * 4
            c = "0" if s == 0 else f"v[{8+4*t}:{11+4*t}]"
            e(f"v_mfma_f32_16x16x32_bf16 v[{8+4*t}:{11+4*t}], v[{r}:{r+3}], v[{QBV+4*s}:{QBV+4*s+3}], {c}")
    e(f"""
    s_mov_b32 s56, {SCALE}
    s_nop 7
    s_nop 3
    """)
    for q in range(4):
        a = 8 + 2 * q
        e(f"""
        v_cvt_pk_bf16_f32 v2, v{a}, v{a+1}
        v_lshlrev_b32 v{a}, 16, v2
        v_and_b32 v{a+1}, 0xffff0000, v2
        v_mul_f32 v{a}, s56, v{a}
        v_mul_f32 v{a+1}, s56, v{a+1}
        v_cvt_pk_bf16_f32 v2, v{a}, v{a+1}
        v_lshlrev_b32 v{a}, 16, v2
        v_and_b32 v{a+1}, 0xffff0000, v2
        """)
    e(f"""
    v_lshrrev_b32 v3, 4, v0
    v_lshlrev_b32 v3, 4, v3
    s_lshl_b32 s52, s51, 7
    v_add_u32 v3, s52, v3
    s_mov_b32 s66, 0x00010001
    s_mov_b32 s67, 0x00010001
    s_mov_b64 exec, s[66:67]
    ds_write_b128 v3, v[8:11] offset:{L_SC}
    ds_write_b128 v3, v[12:15] offset:{L_SC+64}
    s_mov_b64 exec, -1
    """)
    signal(3)
    stamp(3)
    stamp_out(1, "L_so1")
    e("s_endpgm")

    e("""
    L_wrole:
    s_barrier
    ; B0a
    """)
    if opt.get("wgate", 1):
        wait_cnt(8, 4)
    wo_loads()
    wait_cnt(5, 2)
    stamp(4)
    e(f"""
    v_mul_u32_u24 v2, 205, v0
    v_lshrrev_b32 v2, 11, v2
    v_mul_u32_u24 v3, 10, v2
    v_sub_u32 v3, v0, v3
    v_lshlrev_b32 v4, 2, v2
    s_mul_i32 s52, s51, 192
    v_add_u32 v4, s52, v4
    """)
    OV = 16
    AC = 24
    for i in range(8):
        e(f"ds_read_b32 v{OV+i}, v4 offset:{L_OF + i*24}")
    for c in range(8):
        e(f"v_mov_b32 v{AC+c}, 0")
    e("s_waitcnt vmcnt(0) lgkmcnt(0)")
    for i in range(8):
        for d in range(4):
            r = WO0 + 4 * i + d
            e(f"""
            v_lshlrev_b32 v10, 16, v{r}
            v_and_b32 v11, 0xffff0000, v{r}
            v_fmac_f32 v{AC+2*d}, v{OV+i}, v10
            v_fmac_f32 v{AC+2*d+1}, v{OV+i}, v11
            """)
    e(f"""
    v_mul_u32_u24 v4, 320, v2
    v_lshlrev_b32 v5, 5, v3
    v_add_u32 v4, v4, v5
    s_mul_i32 s52, s51, 1920
    v_add_u32 v4, s52, v4
    s_mov_b32 s66, -1
    s_mov_b32 s67, 0x0fffffff
    s_mov_b64 exec, s[66:67]
    ds_write_b128 v4, v[{AC}:{AC+3}] offset:{L_P2}
    ds_write_b128 v4, v[{AC+4}:{AC+7}] offset:{L_P2+16}
    s_mov_b64 exec, -1
    """)
    signal(6)
    e("s_endpgm")

    V0 = 16
    P0 = 112

    def v_loads():
        e(f"""
        v_mul_u32_u24 v1, 12, v0
        s_lshl_b32 s53, s49, 7
        s_lshl_b32 s52, s51, 5
        s_add_u32 s53, s53, s52
        s_add_u32 s53, s53, 3072
        s_mul_i32 s53, s53, 384
        s_mul_i32 s52, s48, 1572864
        s_add_u32 s53, s53, s52
        """)
        for i in range(16):
            r = V0 + 4 * i
            if VD and i >= VD:
                e(f"s_waitcnt vmcnt({VD - 1})")
            e(f"buffer_load_dwordx3 v[{r}:{r+2}], v1, s[24:27], s53 offen offset:{(i % 4) * 768} {NT}")
            if i % 4 == 3 and i < 15:
                e("s_add_u32 s53, s53, 3072")

    e(f"""
    L_vrole:
    s_barrier
    ; B0a
    """)
    if opt.get("vgate", 1):
        wait_cnt(0, 4)
    stamp(1)
    v_loads()
    signal(8)
    stamp(2)
    wait_cnt(3, 4)
    stamp(3)
    e(f"""
    v_lshlrev_b32 v8, 3, v0
    ds_read_b64 v[8:9], v8 offset:{L_SC}
    v_lshrrev_b32 v10, 5, v0
    v_lshlrev_b32 v10, 2, v10
    s_lshl_b32 s52, s51, 7
    v_add_u32 v10, s52, v10
    """)
    for i in range(16):
        e(f"ds_read_b32 v{P0+i}, v10 offset:{L_SC + i*8}")
    e(f"""
    s_waitcnt lgkmcnt(0)
    v_max_f32 v8, v8, v9
    s_nop 1
    v_max_f32_dpp v8, v8, v8 row_shr:1 row_mask:0xf bank_mask:0xf
    s_nop 1
    v_max_f32_dpp v8, v8, v8 row_shr:2 row_mask:0xf bank_mask:0xf
    s_nop 1
    v_max_f32_dpp v8, v8, v8 row_shr:4 row_mask:0xf bank_mask:0xf
    s_nop 1
    v_max_f32_dpp v8, v8, v8 row_shr:8 row_mask:0xf bank_mask:0xf
    s_nop 1
    v_max_f32_dpp v8, v8, v8 row_bcast:15 row_mask:0xa bank_mask:0xf
    s_nop 1
    v_max_f32_dpp v8, v8, v8 row_bcast:31 row_mask:0xc bank_mask:0xf
    s_nop 1
    v_readlane_b32 s57, v8, 63
    s_mov_b32 s58, {LOG2E}
    s_nop 1
    v_mov_b32 v9, 0
    """)
    for i in range(16):
        e(f"""
        v_subrev_f32 v{P0+i}, s57, v{P0+i}
        v_mul_f32 v{P0+i}, s58, v{P0+i}
        v_exp_f32 v{P0+i}, v{P0+i}
        """)
    e("s_nop 0")
    for i in range(16):
        e(f"v_add_f32 v9, v9, v{P0+i}")
    e("""
    v_mov_b32 v2, 0
    v_mov_b32 v3, 0
    v_mov_b32 v4, 0
    v_mov_b32 v5, 0
    v_mov_b32 v6, 0
    v_mov_b32 v7, 0
    """)
    stamp(4)
    for i in range(16):
        e(f"s_waitcnt vmcnt({15 - i})")
        for d in range(3):
            r = V0 + 4 * i + d
            e(f"""
            v_lshlrev_b32 v10, 16, v{r}
            v_and_b32 v11, 0xffff0000, v{r}
            v_fmac_f32 v{2+2*d}, v{P0+i}, v10
            v_fmac_f32 v{3+2*d}, v{P0+i}, v11
            """)
    stamp(5)
    e(f"""
    v_and_b32 v1, 31, v0
    v_lshrrev_b32 v10, 5, v0
    v_mul_u32_u24 v1, 24, v1
    v_mul_u32_u24 v11, 768, v10
    v_add_u32 v1, v1, v11
    s_mul_i32 s52, s51, 1536
    v_add_u32 v1, s52, v1
    ds_write_b64 v1, v[2:3] offset:{L_OP}
    ds_write_b64 v1, v[4:5] offset:{L_OP+8}
    ds_write_b64 v1, v[6:7] offset:{L_OP+16}
    v_lshlrev_b32 v10, 2, v10
    s_lshl_b32 s52, s51, 3
    v_add_u32 v10, s52, v10
    v_mov_b32 v11, s57
    v_mov_b32 v12, {L_LS+32}
    s_mov_b32 s66, 1
    s_mov_b32 s67, 1
    s_mov_b64 exec, s[66:67]
    ds_write_b32 v10, v9 offset:{L_LS}
    ds_write_b32 v12, v11
    s_mov_b64 exec, -1
    """)
    signal(4)
    stamp(7)
    stamp_out(2, "L_so2")
    e("L_end:")
    e("s_endpgm")

    out = HEADER
    out += f"; @launch grid=(256,1,1) block=(1024,1,1) lds={LDS_BYTES}\n"
    out += f""".amdgcn_target "amdgcn-amd-amdhsa--gfx950"
.text
.globl {NAME}_kernel
.p2align 8
.type {NAME}_kernel,@function
{NAME}_kernel:
{e.text()}.section .rodata,"a"
.p2align 6
.amdhsa_kernel {NAME}_kernel
  .amdhsa_next_free_vgpr 128
  .amdhsa_next_free_sgpr 96
  .amdhsa_accum_offset 128
  .amdhsa_group_segment_fixed_size 0
  .amdhsa_kernarg_size 64
  .amdhsa_user_sgpr_count 2
  .amdhsa_user_sgpr_kernarg_segment_ptr 1
  .amdhsa_system_sgpr_workgroup_id_x 1
  .amdhsa_float_denorm_mode_32 3
.end_amdhsa_kernel
"""
    return out


if __name__ == "__main__":
    opt = {}
    outp = f"cdna_kernels/{NAME}.s"
    for a in sys.argv[1:]:
        k, v = a.split("=")
        if k == "out":
            outp = v
        else:
            opt[k] = int(v)
    open(outp, "w").write(gen(opt))
    print("wrote", outp)
```

```python
import sys
import struct

NAME = "standalone__sliding_block_cached__decode"

HEADER = """; Kernarg layout for this problem (64 bytes, ptrs only, base s[0:1]):
;   offset  40: d_out     shape=(1, 1, 640) dtype=bfloat16 (2 bytes/elem)
"""

L_QP = 0x0000
L_QB = 0x1800
L_NONCE = 0x1A00
L_CNT = 0x1A20
L_SC = 0x1B00
L_LS = 0x1D00
L_OF = 0x1E00
L_OP = 0x2200
L_P2 = 0x3A00
L_FR = 0x5800
L_KT = 0x6000
LDS_BYTES = 0x6000 + 4 * 32 * 400

WS_Q = 0x0
WS_O = 0x80000
WS_F = 0x100000
WS_BYTES = 0x400000
DELTA = 0x200000

TAGX = 0x9E3779B9
SCALE = 0x3D93CD3A
LOG2E = 0x3FB8AA3B
SPIN_MAX = 1 << 16


class E:
    def __init__(self):
        self.l = []

    def __call__(self, s):
        for line in s.strip("\n").split("\n"):
            t = line.strip()
            if not t:
                continue
            if t.endswith(":") and " " not in t:
                self.l.append(t)
            else:
                self.l.append("    " + t)

    def text(self):
        return "\n".join(self.l) + "\n"


def gen(opt):
    assert struct.unpack("<I", struct.pack("<f", 192 ** -0.5))[0] == SCALE
    e = E()
    ST = opt.get("stamps", 0)
    wwhen = opt.get("wwhen", 2)
    KD = opt.get("kd", 0)
    BM = opt.get("bm", 15)
    BN = opt.get("bn", 8)
    NT = "nt" if opt.get("nt", 1) else ""
    PF = "" if opt.get("plainpub", 0) else "sc1"
    VD = opt.get("vd", 0)

    def stamp(idx):
        if ST:
            e(f"""
            s_memrealtime s[72:73]
            s_waitcnt lgkmcnt(0)
            s_mov_b32 s{74+idx}, s72
            """)

    def stamp_out(part, lab):
        if ST:
            e(f"""
            s_mov_b64 exec, -1
            s_cmp_lg_u32 s51, 0
            s_cbranch_scc1 {lab}
            s_lshl_b32 s72, s2, 8
            s_add_u32 s72, s72, {0x180000 + part*80}
            v_mov_b32 v3, 0
            s_mov_b64 exec, 1
            """)
            for i in range(20):
                e(f"v_mov_b32 v2, s{74+i}")
                e(f"buffer_store_dword v2, v3, s[44:47], s72 offen offset:{i*4}")
                e("s_nop 1")
            e("s_waitcnt vmcnt(0)")
            e(f"{lab}:")

    lab_n = [0]

    def signal(k):
        e(f"""
        v_mov_b32 v126, {L_CNT + 4*k}
        v_mov_b32 v127, 1
        s_mov_b64 s[68:69], exec
        s_mov_b64 exec, 1
        ds_add_u32 v126, v127
        s_mov_b64 exec, s[68:69]
        """)

    def wait_cnt(k, n):
        lab_n[0] += 1
        a = f"L_w{lab_n[0]}"
        e(f"""
        v_mov_b32 v126, {L_CNT + 4*k}
        s_mov_b32 s69, 0
        {a}:
        ds_read_b32 v127, v126
        s_waitcnt lgkmcnt(0)
        v_readfirstlane_b32 s68, v127
        s_add_u32 s69, s69, 1
        s_cmp_ge_u32 s69, {SPIN_MAX * 16}
        s_cbranch_scc1 {a}d
        s_cmp_lt_u32 s68, {n}
        s_cbranch_scc1 {a}
        {a}d:
        """)

    e(f"""
    s_cmp_ge_u32 s2, 256
    s_cbranch_scc1 L_end
    s_load_dwordx16 s[4:19], s[0:1], 0
    s_memrealtime s[70:71]
    v_lshrrev_b32 v1, 6, v0
    v_and_b32 v0, 63, v0
    {"s_lshr_b32 s48, s2, 3" if opt.get("hmap", 0) else "s_and_b32 s48, s2, 31"}
    {"s_and_b32 s49, s2, 7" if opt.get("hmap", 0) else "s_lshr_b32 s49, s2, 5"}
    v_readfirstlane_b32 s50, v1
    s_waitcnt lgkmcnt(0)
    """)
    srds = [(20, 6, 50331648), (24, 8, 50331648), (28, 10, 7864320), (32, 12, 7864320),
            (36, 14, 1280), (40, 16, 256), (44, 18, WS_BYTES)]
    for d, p, n in srds:
        e(f"""
        s_mov_b32 s{d}, s{p}
        s_and_b32 s{d+1}, s{p+1}, 0xffff
        s_mov_b32 s{d+2}, {n}
        s_mov_b32 s{d+3}, 0x00020000
        """)
    if ST:
        for i in range(20):
            e(f"s_mov_b32 s{74+i}, 0")
    stamp(0)
    e("""
    s_and_b32 s51, s50, 3
    s_cmp_ge_u32 s50, 12
    s_cbranch_scc1 L_wrole
    s_cmp_ge_u32 s50, 8
    s_cbranch_scc1 L_vrole
    s_cmp_ge_u32 s50, 4
    s_cbranch_scc1 L_krole
    """)

    WQ0 = 16
    e(f"""
    s_cmp_lg_u32 s51, 0
    s_cbranch_scc1 L_q_nononce
    s_or_b32 s70, s70, 1
    v_mov_b32 v12, s70
    v_mov_b32 v13, 0
    s_lshl_b32 s71, s48, 2
    s_add_u32 s71, s71, 128
    v_mov_b32 v14, s71
    v_mov_b32 v2, 0
    v_lshlrev_b32 v3, 2, v0
    s_mov_b64 exec, 1
    buffer_atomic_cmpswap v[12:13], v14, s[40:43], 0 offen sc0 sc1
    s_mov_b64 exec, 0xffff
    ds_write_b32 v3, v2 offset:{L_CNT}
    s_mov_b64 exec, -1
    L_q_nononce:
    s_mul_i32 s52, s49, 160
    s_mul_i32 s53, s51, 40
    s_add_u32 s52, s52, s53
    s_add_u32 s54, s4, s52
    s_addc_u32 s55, s5, 0
    s_load_dwordx8 s[56:63], s[54:55], 0
    s_load_dwordx2 s[64:65], s[54:55], 32
    v_and_b32 v1, 31, v0
    v_lshrrev_b32 v9, 5, v0
    v_mul_u32_u24 v1, 12, v1
    v_mul_u32_u24 v3, 0x3000, v9
    v_add_u32 v1, v1, v3
    s_mul_i32 s52, s49, 80
    s_mul_i32 s53, s51, 20
    s_add_u32 s52, s52, s53
    s_mul_i32 s52, s52, 12288
    s_mul_i32 s53, s48, 384
    s_add_u32 s52, s52, s53
    """)
    for i in range(10):
        e(f"buffer_load_dwordx3 v[{WQ0+4*i}:{WQ0+4*i+2}], v1, s[28:31], s52 offen {NT}")
        if i < 9:
            e("s_add_u32 s52, s52, 24576")
    stamp(1)
    e(f"""
    s_waitcnt lgkmcnt(0)
    s_barrier
    ; B0a
    v_cmp_gt_u32 vcc, 32, v0
    v_mov_b32 v11, 0
    v_mov_b32 v2, 0
    v_cndmask_b32 v9, v11, 16, vcc
    v_mov_b32 v3, 0
    v_mov_b32 v4, 0
    v_mov_b32 v5, 0
    v_mov_b32 v6, 0
    v_mov_b32 v7, 0
    s_waitcnt lgkmcnt(0)
    """)
    for i in range(10):
        e(f"s_waitcnt vmcnt({9 - i})")
        e(f"""
        v_lshlrev_b32_e64 v8, v9, s{56+i}
        v_and_b32 v8, 0xffff0000, v8
        """)
        for d in range(3):
            r = WQ0 + 4 * i + d
            e(f"""
            v_lshlrev_b32 v10, 16, v{r}
            v_and_b32 v11, 0xffff0000, v{r}
            v_fmac_f32 v{2+2*d}, v8, v10
            v_fmac_f32 v{3+2*d}, v8, v11
            """)
    stamp(2)
    e(f"""
    v_and_b32 v1, 31, v0
    v_lshrrev_b32 v9, 5, v0
    v_mul_u32_u24 v1, 24, v1
    v_mul_u32_u24 v9, 768, v9
    v_add_u32 v1, v1, v9
    s_mul_i32 s52, s51, 1536
    v_add_u32 v1, s52, v1
    ds_write_b64 v1, v[2:3] offset:{L_QP}
    ds_write_b64 v1, v[4:5] offset:{L_QP+8}
    ds_write_b64 v1, v[6:7] offset:{L_QP+16}
    s_cmp_lg_u32 s51, 0
    s_cbranch_scc1 L_q_nononce2
    v_cmp_eq_u32 vcc, 0, v12
    v_mov_b32 v13, s70
    v_mov_b32 v14, {L_NONCE}
    v_cndmask_b32 v12, v12, v13, vcc
    s_mov_b64 exec, 1
    ds_write_b32 v14, v12
    s_mov_b64 exec, -1
    L_q_nononce2:
    """)
    signal(1)
    wait_cnt(1, 4)
    stamp(3)
    G0 = 16
    e(f"""
    v_mov_b32 v14, {L_NONCE}
    ds_read_b32 v12, v14
    s_lshr_b32 s60, s51, 1
    s_and_b32 s61, s51, 1
    s_cmp_eq_u32 s61, 1
    s_cselect_b32 s67, 0, -1
    s_mov_b32 s66, -1
    s_mov_b64 exec, s[66:67]
    s_lshl_b32 s52, s61, 6
    v_add_u32 v1, s52, v0
    v_lshlrev_b32 v8, 3, v1
    """)
    for p in range(8):
        e(f"ds_read_b64 v[{G0+2*p}:{G0+2*p+1}], v8 offset:{L_QP + p*768}")
    e("s_waitcnt lgkmcnt(0)")
    e(f"v_add_f32 v2, v{G0}, v{G0+2}")
    e(f"v_add_f32 v3, v{G0+1}, v{G0+3}")
    for p in range(2, 8):
        e(f"v_add_f32 v2, v2, v{G0+2*p}")
        e(f"v_add_f32 v3, v3, v{G0+2*p+1}")
    e(f"""
    v_mov_b32 v4, v12
    v_xor_b32 v5, {TAGX}, v12
    v_lshlrev_b32 v9, 4, v1
    s_mul_i32 s52, s48, 12288
    s_mul_i32 s53, s49, 1536
    s_add_u32 s53, s53, s52
    s_cmp_eq_u32 s60, 0
    s_cbranch_scc1 L_q_pubA1
    s_add_u32 s53, s53, {DELTA}
    buffer_store_dwordx4 v[2:5], v9, s[44:47], s53 offen sc1
    s_mov_b64 exec, -1
    s_branch L_q_afterq
    L_q_pubA1:
    buffer_store_dwordx4 v[2:5], v9, s[44:47], s53 offen
    """)
    stamp(4)
    PD = opt.get("pd", 3)
    sets = [16 + 32 * k for k in range(PD)]

    def p1_issue(base):
        e(f"""
        s_cmp_ge_u32 s68, {BN}
        s_cselect_b32 s53, s68, 0
        s_and_b32 s53, s53, 1
        s_mul_i32 s53, s53, {DELTA}
        s_add_u32 s53, s53, s52
        s_add_u32 s68, s68, 1
        """)
        for jj in range(8):
            e(f"buffer_load_dwordx4 v[{base+4*jj}:{base+4*jj+3}], v9, s[44:47], s53 offen sc1")
            if jj < 7:
                e("s_add_u32 s53, s53, 1536")

    e("s_mov_b32 s68, 0")
    for k in range(PD):
        p1_issue(sets[k])
    e("L_q_poll1:")
    for k in range(PD):
        base = sets[k]
        e(f"s_waitcnt vmcnt({8 * (PD - 1)})")
        e("v_mov_b32 v10, 0")
        for jj in range(8):
            e(f"""
            v_xor_b32 v6, v{base+4*jj+2}, v4
            v_xor_b32 v7, v{base+4*jj+3}, v5
            v_or3_b32 v10, v10, v6, v7
            """)
        e(f"""
        v_cmp_ne_u32 vcc, 0, v10
        s_cmp_ge_u32 s68, {SPIN_MAX}
        s_cbranch_scc1 L_q_p1ok{k}
        s_cbranch_vccz L_q_p1ok{k}
        """)
        p1_issue(base)
    e("s_branch L_q_poll1")
    for k in range(PD):
        base = sets[k]
        e(f"L_q_p1ok{k}:")
        e(f"v_add_f32 v2, v{base}, v{base+4}")
        e(f"v_add_f32 v3, v{base+1}, v{base+5}")
        for jj in range(2, 8):
            e(f"v_add_f32 v2, v2, v{base+4*jj}")
            e(f"v_add_f32 v3, v3, v{base+4*jj+1}")
        if k < PD - 1:
            e("s_branch L_q_p1done")
    e("L_q_p1done:")
    stamp(5)
    e(f"""
    v_cvt_pk_bf16_f32 v2, v2, v3
    v_lshlrev_b32 v8, 2, v1
    ds_write_b32 v8, v2 offset:{L_QB}
    s_mov_b64 exec, -1
    """)
    signal(2)
    e("L_q_afterq:")
    wait_cnt(4, 4)
    e("s_waitcnt vmcnt(0)")
    stamp(6)
    GO = 16
    GM = 48
    e(f"""
    s_mov_b64 exec, s[66:67]
    v_lshlrev_b32 v8, 3, v1
    v_mov_b32 v14, {L_LS}
    ds_read_b128 v[{GM}:{GM+3}], v14
    ds_read_b128 v[{GM+4}:{GM+7}], v14 offset:16
    ds_read_b32 v15, v14 offset:32
    """)
    for p in range(8):
        e(f"ds_read_b64 v[{GO+2*p}:{GO+2*p+1}], v8 offset:{L_OP + p*768}")
    e("s_waitcnt lgkmcnt(0)")
    e(f"v_add_f32 v2, v{GO}, v{GO+2}")
    e(f"v_add_f32 v3, v{GO+1}, v{GO+3}")
    for p in range(2, 8):
        e(f"v_add_f32 v2, v2, v{GO+2*p}")
        e(f"v_add_f32 v3, v3, v{GO+2*p+1}")
    e(f"v_add_f32 v7, v{GM}, v{GM+1}")
    for p in range(2, 8):
        e(f"v_add_f32 v7, v7, v{GM+p}")
    e(f"""
    s_lshl_b32 s52, s48, 14
    s_add_u32 s52, s52, {WS_O}
    s_lshl_b32 s53, s49, 11
    s_add_u32 s53, s53, s52
    v_mov_b32 v13, 1536
    v_mov_b32 v{GM}, v15
    v_mov_b32 v{GM+1}, v7
    v_mov_b32 v{GM+2}, v4
    v_mov_b32 v{GM+3}, v5
    s_cmp_eq_u32 s60, 0
    s_cbranch_scc1 L_q_pubA2
    s_add_u32 s53, s53, {DELTA}
    buffer_store_dwordx4 v[2:5], v9, s[44:47], s53 offen sc1
    s_mov_b64 exec, -1
    s_cmp_lg_u32 s61, 0
    s_cbranch_scc1 L_q_skip1
    s_mov_b64 exec, 1
    buffer_store_dwordx4 v[{GM}:{GM+3}], v13, s[44:47], s53 offen sc1
    s_mov_b64 exec, -1
    s_branch L_q_skip1
    L_q_pubA2:
    buffer_store_dwordx4 v[2:5], v9, s[44:47], s53 offen
    s_cmp_lg_u32 s61, 0
    s_cbranch_scc1 L_q_noml
    s_mov_b64 exec, 1
    buffer_store_dwordx4 v[{GM}:{GM+3}], v13, s[44:47], s53 offen
    s_mov_b64 exec, s[66:67]
    L_q_noml:
    """)
    stamp(7)
    OD = opt.get("od", 3)
    osets = [16 + 36 * k for k in range(OD)]
    e(f"""
    s_mov_b32 s68, 0
    v_and_b32 v13, 7, v0
    v_lshlrev_b32 v13, 11, v13
    v_add_u32 v13, 1536, v13
    s_mov_b32 s58, {LOG2E}
    """)

    def p2_issue(base):
        e(f"""
        s_cmp_ge_u32 s68, {BN}
        s_cselect_b32 s53, s68, 0
        s_and_b32 s53, s53, 1
        s_mul_i32 s53, s53, {DELTA}
        s_add_u32 s53, s53, s52
        s_add_u32 s68, s68, 1
        buffer_load_dwordx4 v[{base+32}:{base+35}], v13, s[44:47], s53 offen sc1
        """)
        for jj in range(8):
            e(f"buffer_load_dwordx4 v[{base+4*jj}:{base+4*jj+3}], v9, s[44:47], s53 offen sc1")
            if jj < 7:
                e("s_add_u32 s53, s53, 2048")

    for k in range(OD):
        p2_issue(osets[k])
    e("L_q_poll2:")
    for k in range(OD):
        base = osets[k]
        e(f"s_waitcnt vmcnt({9 * (OD - 1)})")
        e(f"""
        v_xor_b32 v6, v{base+34}, v4
        v_xor_b32 v7, v{base+35}, v5
        v_or_b32 v10, v6, v7
        """)
        for jj in range(8):
            e(f"""
            v_xor_b32 v6, v{base+4*jj+2}, v4
            v_xor_b32 v7, v{base+4*jj+3}, v5
            v_or3_b32 v10, v10, v6, v7
            """)
        e(f"""
        v_cmp_ne_u32 vcc, 0, v10
        s_cmp_ge_u32 s68, {SPIN_MAX}
        s_cbranch_scc1 L_q_p2ok{k}
        s_cbranch_vccz L_q_p2ok{k}
        """)
        p2_issue(base)
    e("s_branch L_q_poll2")
    for k in range(OD):
        base = osets[k]
        m, l = base + 32, base + 33
        e(f"""
        L_q_p2ok{k}:
        v_max_f32_dpp v6, v{m}, v{m} quad_perm:[1,0,3,2] row_mask:0xf bank_mask:0xf
        s_nop 1
        v_max_f32_dpp v6, v6, v6 quad_perm:[2,3,0,1] row_mask:0xf bank_mask:0xf
        s_nop 1
        v_max_f32_dpp v6, v6, v6 row_half_mirror row_mask:0xf bank_mask:0xf
        v_sub_f32 v6, v{m}, v6
        v_mul_f32 v6, s58, v6
        v_exp_f32 v6, v6
        s_nop 0
        v_mul_f32 v7, v6, v{l}
        s_nop 1
        v_add_f32_dpp v7, v7, v7 quad_perm:[1,0,3,2] row_mask:0xf bank_mask:0xf
        s_nop 1
        v_add_f32_dpp v7, v7, v7 quad_perm:[2,3,0,1] row_mask:0xf bank_mask:0xf
        s_nop 1
        v_add_f32_dpp v7, v7, v7 row_half_mirror row_mask:0xf bank_mask:0xf
        """)
        for jj in range(8):
            e(f"v_readlane_b32 s{56 + (jj if jj < 2 else jj + 1)}, v6, {jj}")
        e("""
        v_mov_b32 v2, 0
        v_mov_b32 v3, 0
        """)
        for jj in range(8):
            sj = 56 + (jj if jj < 2 else jj + 1)
            e(f"""
            v_fmac_f32 v2, s{sj}, v{base+4*jj}
            v_fmac_f32 v3, s{sj}, v{base+4*jj+1}
            """)
        if k < OD - 1:
            e("s_branch L_q_p2done")
    e("L_q_p2done:")
    stamp(8)
    e(f"""
    v_rcp_f32 v7, v7
    s_nop 0
    v_mul_f32 v2, v2, v7
    v_mul_f32 v3, v3, v7
    v_cvt_pk_bf16_f32 v6, v2, v3
    v_lshlrev_b32 v2, 16, v6
    v_and_b32 v3, 0xffff0000, v6
    v_lshlrev_b32 v8, 3, v1
    ds_write_b64 v8, v[2:3] offset:{L_OF}
    s_mov_b64 exec, -1
    """)
    signal(5)
    e(f"""
    L_q_skip1:
    s_mov_b32 s66, -1
    s_mov_b32 s67, 0xff
    v_lshlrev_b32 v9, 4, v0
    v_lshlrev_b32 v8, 3, v0
    s_cmp_lg_u32 s51, 0
    s_cbranch_scc1 L_q_nopub
    """)
    wait_cnt(6, 4)
    e("s_waitcnt vmcnt(0)")
    stamp(9)
    e("s_mov_b64 exec, s[66:67]")
    for p in range(24):
        e(f"ds_read_b64 v[{16+2*p}:{17+2*p}], v8 offset:{L_P2 + p*320}")
    e("s_waitcnt lgkmcnt(0)")
    e("v_add_f32 v2, v16, v18")
    e("v_add_f32 v3, v17, v19")
    for p in range(2, 24):
        e(f"v_add_f32 v2, v2, v{16+2*p}")
        e(f"v_add_f32 v3, v3, v{17+2*p}")
    e(f"""
    v_mov_b32 v4, v12
    v_xor_b32 v5, {TAGX}, v12
    s_lshl_b32 s52, s49, 5
    s_add_u32 s52, s52, s48
    s_lshl_b32 s52, s52, 10
    s_add_u32 s52, s52, {WS_F}
    buffer_store_dwordx4 v[2:5], v9, s[44:47], s52 offen sc1
    L_q_nopub:
    s_mov_b64 exec, s[66:67]
    """)
    stamp(10)
    e(f"""
    s_cmp_lg_u32 s48, s49
    s_cbranch_scc1 L_q_end
    s_lshl_b32 s52, s49, 5
    s_lshl_b32 s53, s51, 3
    s_add_u32 s52, s52, s53
    s_lshl_b32 s52, s52, 10
    s_add_u32 s52, s52, {WS_F}
    s_lshl_b32 s53, s51, 5
    s_add_u32 s53, s53, 128
    v_mov_b32 v14, s53
    s_mov_b32 s68, 0
    """)
    RD = opt.get("rd", 3)
    rsets = [16 + 40 * k for k in range(RD)]

    def r_issue(base):
        e(f"""
        s_mov_b32 s53, s52
        s_add_u32 s68, s68, 1
        buffer_load_dwordx4 v[{base+32}:{base+35}], v14, s[40:43], 0 offen sc1
        buffer_load_dwordx4 v[{base+36}:{base+39}], v14, s[40:43], 0 offen offset:16 sc1
        """)
        for hh in range(8):
            e(f"buffer_load_dwordx4 v[{base+4*hh}:{base+4*hh+3}], v9, s[44:47], s53 offen sc1")
            if hh < 7:
                e("s_add_u32 s53, s53, 1024")

    for k in range(RD):
        r_issue(rsets[k])
    e("L_r_poll:")
    for k in range(RD):
        base = rsets[k]
        e(f"s_waitcnt vmcnt({10 * (RD - 1)})")
        e("v_mov_b32 v10, 0")
        for hh in range(8):
            e(f"""
            v_xor_b32 v6, v{base+4*hh+2}, v{base+32+hh}
            v_xor_b32 v7, {TAGX}, v{base+32+hh}
            v_xor_b32 v7, v{base+4*hh+3}, v7
            v_or3_b32 v10, v10, v6, v7
            """)
        e(f"""
        v_cmp_ne_u32 vcc, 0, v10
        s_cmp_ge_u32 s68, {SPIN_MAX}
        s_cbranch_scc1 L_r_ok{k}
        s_cbranch_vccz L_r_ok{k}
        """)
        r_issue(base)
    e("s_branch L_r_poll")
    for k in range(RD):
        base = rsets[k]
        e(f"L_r_ok{k}:")
        e(f"v_add_f32 v2, v{base}, v{base+4}")
        e(f"v_add_f32 v3, v{base+1}, v{base+5}")
        for hh in range(2, 8):
            e(f"v_add_f32 v2, v2, v{base+4*hh}")
            e(f"v_add_f32 v3, v3, v{base+4*hh+1}")
        if k < RD - 1:
            e("s_branch L_r_done")
    e("L_r_done:")
    stamp(11)
    e(f"""
    s_mul_i32 s53, s51, 320
    v_add_u32 v4, s53, v8
    ds_write_b64 v4, v[2:3] offset:{L_FR}
    s_mov_b64 exec, -1
    """)
    signal(7)
    e(f"""
    s_cmp_lg_u32 s51, 0
    s_cbranch_scc1 L_q_end
    """)
    wait_cnt(7, 4)
    e(f"""
    s_mov_b64 exec, s[66:67]
    ds_read_b64 v[120:121], v8 offset:{L_FR}
    ds_read_b64 v[122:123], v8 offset:{L_FR+320}
    ds_read_b64 v[124:125], v8 offset:{L_FR+640}
    ds_read_b64 v[10:11], v8 offset:{L_FR+960}
    s_waitcnt lgkmcnt(0)
    v_add_f32 v2, v120, v122
    v_add_f32 v3, v121, v123
    v_add_f32 v2, v2, v124
    v_add_f32 v3, v3, v125
    v_add_f32 v2, v2, v10
    v_add_f32 v3, v3, v11
    v_cvt_pk_bf16_f32 v2, v2, v3
    {"s_sleep 127" if opt.get("delay", 0) else ""}
    {"s_sleep 127" if opt.get("delay", 0) else ""}
    v_lshlrev_b32 v8, 2, v0
    s_mul_i32 s53, s49, 160
    buffer_store_dword v2, v8, s[36:39], s53 offen
    s_waitcnt vmcnt(0)
    """)
    if opt.get("dbgtime", 0):
        e("""
        s_memrealtime s[72:73]
        s_waitcnt lgkmcnt(0)
        s_lshl_b32 s53, s49, 2
        v_mov_b32 v2, s72
        v_mov_b32 v3, s70
        v_mov_b32 v4, s53
        s_mov_b64 exec, 1
        buffer_store_dword v2, v4, s[40:43], 0 offen
        buffer_store_dword v3, v4, s[40:43], 0 offen offset:32
        s_waitcnt vmcnt(0)
        """)
    stamp(12)
    e("L_q_end:")
    stamp_out(0, "L_so0")
    e("s_endpgm")

    WO0 = 88

    def wo_loads():
        e(f"""
        v_mul_u32_u24 v2, 205, v0
        v_lshrrev_b32 v2, 11, v2
        v_mul_u32_u24 v3, 10, v2
        v_sub_u32 v3, v0, v3
        v_mul_u32_u24 v4, 1280, v2
        v_lshlrev_b32 v5, 4, v3
        v_add_u32 v4, v4, v5
        v_cmp_gt_u32 vcc, 60, v0
        v_mov_b32 v5, 0x7ffffff0
        s_nop 1
        v_cndmask_b32 v4, v5, v4, vcc
        s_mul_i32 s52, s48, 192
        s_mul_i32 s53, s51, 48
        s_add_u32 s52, s52, s53
        s_mul_i32 s52, s52, 1280
        s_mul_i32 s53, s49, 160
        s_add_u32 s52, s52, s53
        """)
        for i in range(8):
            r = WO0 + 4 * i
            if VD:
                e(f"s_waitcnt vmcnt({VD - 1})")
            e(f"buffer_load_dwordx4 v[{r}:{r+3}], v4, s[32:35], s52 offen {NT}")
            if i < 7:
                e("s_add_u32 s52, s52, 7680")


    K0 = 16
    QBV = 64
    e(f"""
    L_krole:
    """)
    if opt.get("pf", 0):
        e(f"""
        s_getpc_b64 s[62:63]
        L_pc:
        s_sub_u32 s62, s62, L_pc-{NAME}_kernel
        s_subb_u32 s63, s63, 0
        v_lshlrev_b32 v4, 6, v0
        s_lshl_b32 s52, s51, 12
        v_add_u32 v4, s52, v4
        v_min_u32 v4, L_end-{NAME}_kernel, v4
        global_load_dword v5, v4, s[62:63]
        """)
    e(f"""
    v_and_b32 v2, 15, v0
    v_lshrrev_b32 v3, 4, v0
    v_mul_u32_u24 v2, 384, v2
    v_lshlrev_b32 v10, 4, v3
    v_add_u32 v2, v2, v10
    s_lshl_b32 s53, s49, 7
    s_lshl_b32 s52, s51, 5
    s_add_u32 s53, s53, s52
    s_add_u32 s53, s53, 3072
    s_mul_i32 s53, s53, 384
    s_mul_i32 s52, s48, 1572864
    s_add_u32 s53, s53, s52
    s_barrier
    ; B0a
    """)
    if opt.get("kgate", 0) == 1:
        wait_cnt(1, 4)
    elif opt.get("kgate", 0) > 1:
        e(f"s_sleep {opt.get('kgate')}")
    e("v_lshlrev_b32 v3, 4, v0")
    for i in range(12):
        r = K0 + i * 4
        if KD and i >= KD:
            e(f"s_waitcnt vmcnt({KD - 1})")
        e(f"buffer_load_dwordx4 v[{r}:{r+3}], v3, s[20:23], s53 offen offset:{(i % 4)*1024} {NT}")
        if i % 4 == 3 and i < 11:
            e("s_add_u32 s53, s53, 4096")
    signal(0)
    stamp(1)
    e(f"""
    s_mul_i32 s52, s51, {32*400}
    s_add_u32 s52, s52, {L_KT}
    """)
    for i in range(12):
        r = K0 + i * 4
        e(f"""
        v_add_u32 v4, {64*i}, v0
        v_mul_u32_u24 v5, 2731, v4
        v_lshrrev_b32 v5, 16, v5
        v_add_u32 v4, v4, v5
        v_lshlrev_b32 v4, 4, v4
        v_add_u32 v4, s52, v4
        s_waitcnt vmcnt({11 - i})
        ds_write_b128 v4, v[{r}:{r+3}]
        """)
    e(f"""
    v_and_b32 v4, 15, v0
    v_lshrrev_b32 v5, 4, v0
    v_mul_u32_u24 v4, 400, v4
    v_lshlrev_b32 v5, 4, v5
    v_add_u32 v4, v4, v5
    v_add_u32 v4, s52, v4
    s_waitcnt lgkmcnt(0)
    """)
    for t in range(2):
        for s in range(6):
            r = K0 + (t * 6 + s) * 4
            e(f"ds_read_b128 v[{r}:{r+3}], v4 offset:{t*6400 + s*64}")
    wait_cnt(2, 2)
    stamp(2)
    e(f"""
    v_lshrrev_b32 v3, 4, v0
    v_lshlrev_b32 v3, 4, v3
    """)
    for s in range(6):
        e(f"ds_read_b128 v[{QBV+4*s}:{QBV+4*s+3}], v3 offset:{L_QB + s*64}")
    e("s_waitcnt lgkmcnt(0)")
    for t in range(2):
        for s in range(6):
            r = K0 + (t * 6 + s) * 4
            c = "0" if s == 0 else f"v[{8+4*t}:{11+4*t}]"
            e(f"v_mfma_f32_16x16x32_bf16 v[{8+4*t}:{11+4*t}], v[{r}:{r+3}], v[{QBV+4*s}:{QBV+4*s+3}], {c}")
    e(f"""
    s_mov_b32 s56, {SCALE}
    s_nop 7
    s_nop 3
    """)
    for q in range(4):
        a = 8 + 2 * q
        e(f"""
        v_cvt_pk_bf16_f32 v2, v{a}, v{a+1}
        v_lshlrev_b32 v{a}, 16, v2
        v_and_b32 v{a+1}, 0xffff0000, v2
        v_mul_f32 v{a}, s56, v{a}
        v_mul_f32 v{a+1}, s56, v{a+1}
        v_cvt_pk_bf16_f32 v2, v{a}, v{a+1}
        v_lshlrev_b32 v{a}, 16, v2
        v_and_b32 v{a+1}, 0xffff0000, v2
        """)
    e(f"""
    v_lshrrev_b32 v3, 4, v0
    v_lshlrev_b32 v3, 4, v3
    s_lshl_b32 s52, s51, 7
    v_add_u32 v3, s52, v3
    s_mov_b32 s66, 0x00010001
    s_mov_b32 s67, 0x00010001
    s_mov_b64 exec, s[66:67]
    ds_write_b128 v3, v[8:11] offset:{L_SC}
    ds_write_b128 v3, v[12:15] offset:{L_SC+64}
    s_mov_b64 exec, -1
    """)
    signal(3)
    stamp(3)
    stamp_out(1, "L_so1")
    e("s_endpgm")

    e("""
    L_wrole:
    s_barrier
    ; B0a
    """)
    if opt.get("wgate", 1):
        wait_cnt(8, 4)
    wo_loads()
    wait_cnt(5, 2)
    stamp(4)
    e(f"""
    v_mul_u32_u24 v2, 205, v0
    v_lshrrev_b32 v2, 11, v2
    v_mul_u32_u24 v3, 10, v2
    v_sub_u32 v3, v0, v3
    v_lshlrev_b32 v4, 2, v2
    s_mul_i32 s52, s51, 192
    v_add_u32 v4, s52, v4
    """)
    OV = 16
    AC = 24
    for i in range(8):
        e(f"ds_read_b32 v{OV+i}, v4 offset:{L_OF + i*24}")
    for c in range(8):
        e(f"v_mov_b32 v{AC+c}, 0")
    e("s_waitcnt vmcnt(0) lgkmcnt(0)")
    for i in range(8):
        for d in range(4):
            r = WO0 + 4 * i + d
            e(f"""
            v_lshlrev_b32 v10, 16, v{r}
            v_and_b32 v11, 0xffff0000, v{r}
            v_fmac_f32 v{AC+2*d}, v{OV+i}, v10
            v_fmac_f32 v{AC+2*d+1}, v{OV+i}, v11
            """)
    e(f"""
    v_mul_u32_u24 v4, 320, v2
    v_lshlrev_b32 v5, 5, v3
    v_add_u32 v4, v4, v5
    s_mul_i32 s52, s51, 1920
    v_add_u32 v4, s52, v4
    s_mov_b32 s66, -1
    s_mov_b32 s67, 0x0fffffff
    s_mov_b64 exec, s[66:67]
    ds_write_b128 v4, v[{AC}:{AC+3}] offset:{L_P2}
    ds_write_b128 v4, v[{AC+4}:{AC+7}] offset:{L_P2+16}
    s_mov_b64 exec, -1
    """)
    signal(6)
    e("s_endpgm")

    V0 = 16
    P0 = 112

    def v_loads():
        e(f"""
        v_mul_u32_u24 v1, 12, v0
        s_lshl_b32 s53, s49, 7
        s_lshl_b32 s52, s51, 5
        s_add_u32 s53, s53, s52
        s_add_u32 s53, s53, 3072
        s_mul_i32 s53, s53, 384
        s_mul_i32 s52, s48, 1572864
        s_add_u32 s53, s53, s52
        """)
        for i in range(16):
            r = V0 + 4 * i
            if VD and i >= VD:
                e(f"s_waitcnt vmcnt({VD - 1})")
            e(f"buffer_load_dwordx3 v[{r}:{r+2}], v1, s[24:27], s53 offen offset:{(i % 4) * 768} {NT}")
            if i % 4 == 3 and i < 15:
                e("s_add_u32 s53, s53, 3072")

    e(f"""
    L_vrole:
    s_barrier
    ; B0a
    """)
    if opt.get("vgate", 1):
        wait_cnt(0, 4)
    stamp(1)
    v_loads()
    signal(8)
    stamp(2)
    wait_cnt(3, 4)
    stamp(3)
    e(f"""
    v_lshlrev_b32 v8, 3, v0
    ds_read_b64 v[8:9], v8 offset:{L_SC}
    v_lshrrev_b32 v10, 5, v0
    v_lshlrev_b32 v10, 2, v10
    s_lshl_b32 s52, s51, 7
    v_add_u32 v10, s52, v10
    """)
    for i in range(16):
        e(f"ds_read_b32 v{P0+i}, v10 offset:{L_SC + i*8}")
    e(f"""
    s_waitcnt lgkmcnt(0)
    v_max_f32 v8, v8, v9
    s_nop 1
    v_max_f32_dpp v8, v8, v8 row_shr:1 row_mask:0xf bank_mask:0xf
    s_nop 1
    v_max_f32_dpp v8, v8, v8 row_shr:2 row_mask:0xf bank_mask:0xf
    s_nop 1
    v_max_f32_dpp v8, v8, v8 row_shr:4 row_mask:0xf bank_mask:0xf
    s_nop 1
    v_max_f32_dpp v8, v8, v8 row_shr:8 row_mask:0xf bank_mask:0xf
    s_nop 1
    v_max_f32_dpp v8, v8, v8 row_bcast:15 row_mask:0xa bank_mask:0xf
    s_nop 1
    v_max_f32_dpp v8, v8, v8 row_bcast:31 row_mask:0xc bank_mask:0xf
    s_nop 1
    v_readlane_b32 s57, v8, 63
    s_mov_b32 s58, {LOG2E}
    s_nop 1
    v_mov_b32 v9, 0
    """)
    for i in range(16):
        e(f"""
        v_subrev_f32 v{P0+i}, s57, v{P0+i}
        v_mul_f32 v{P0+i}, s58, v{P0+i}
        v_exp_f32 v{P0+i}, v{P0+i}
        """)
    e("s_nop 0")
    for i in range(16):
        e(f"v_add_f32 v9, v9, v{P0+i}")
    e("""
    v_mov_b32 v2, 0
    v_mov_b32 v3, 0
    v_mov_b32 v4, 0
    v_mov_b32 v5, 0
    v_mov_b32 v6, 0
    v_mov_b32 v7, 0
    """)
    stamp(4)
    for i in range(16):
        e(f"s_waitcnt vmcnt({15 - i})")
        for d in range(3):
            r = V0 + 4 * i + d
            e(f"""
            v_lshlrev_b32 v10, 16, v{r}
            v_and_b32 v11, 0xffff0000, v{r}
            v_fmac_f32 v{2+2*d}, v{P0+i}, v10
            v_fmac_f32 v{3+2*d}, v{P0+i}, v11
            """)
    stamp(5)
    e(f"""
    v_and_b32 v1, 31, v0
    v_lshrrev_b32 v10, 5, v0
    v_mul_u32_u24 v1, 24, v1
    v_mul_u32_u24 v11, 768, v10
    v_add_u32 v1, v1, v11
    s_mul_i32 s52, s51, 1536
    v_add_u32 v1, s52, v1
    ds_write_b64 v1, v[2:3] offset:{L_OP}
    ds_write_b64 v1, v[4:5] offset:{L_OP+8}
    ds_write_b64 v1, v[6:7] offset:{L_OP+16}
    v_lshlrev_b32 v10, 2, v10
    s_lshl_b32 s52, s51, 3
    v_add_u32 v10, s52, v10
    v_mov_b32 v11, s57
    v_mov_b32 v12, {L_LS+32}
    s_mov_b32 s66, 1
    s_mov_b32 s67, 1
    s_mov_b64 exec, s[66:67]
    ds_write_b32 v10, v9 offset:{L_LS}
    ds_write_b32 v12, v11
    s_mov_b64 exec, -1
    """)
    signal(4)
    stamp(7)
    stamp_out(2, "L_so2")
    e("L_end:")
    e("s_endpgm")

    out = HEADER
    out += f"; @launch grid=(256,1,1) block=(1024,1,1) lds={LDS_BYTES}\n"
    out += f""".amdgcn_target "amdgcn-amd-amdhsa--gfx950"
.text
.globl {NAME}_kernel
.p2align 8
.type {NAME}_kernel,@function
{NAME}_kernel:
{e.text()}.section .rodata,"a"
.p2align 6
.amdhsa_kernel {NAME}_kernel
  .amdhsa_next_free_vgpr 128
  .amdhsa_next_free_sgpr 96
  .amdhsa_accum_offset 128
  .amdhsa_group_segment_fixed_size 0
  .amdhsa_kernarg_size 64
  .amdhsa_user_sgpr_count 2
  .amdhsa_user_sgpr_kernarg_segment_ptr 1
  .amdhsa_system_sgpr_workgroup_id_x 1
  .amdhsa_float_denorm_mode_32 3
.end_amdhsa_kernel
"""
    return out


if __name__ == "__main__":
    opt = {}
    outp = f"cdna_kernels/{NAME}.s"
    for a in sys.argv[1:]:
        k, v = a.split("=")
        if k == "out":
            outp = v
        else:
            opt[k] = int(v)
    open(outp, "w").write(gen(opt))
    print("wrote", outp)
```
